```python
import torch

def _softmax(x, axis=-1):
    return torch.softmax(x, dim=axis)
def _gelu(x):
    return torch.nn.functional.gelu(x, approximate="tanh")
def _silu(x):
    return torch.nn.functional.silu(x)
def _sigmoid(x):
    return torch.sigmoid(x)
def _layernorm(x, axis=-1, eps=1e-5):
    m = x.mean(dim=axis, keepdim=True)
    v = x.var(dim=axis, keepdim=True, unbiased=False)
    return (x - m) / torch.sqrt(v + eps)
def _scatter_add(tgt, idx, src, axis=0):
    return tgt.clone().index_add_(axis, idx, src)
def _segment_sum(src, seg, n):
    out = torch.zeros((n,) + src.shape[1:], dtype=src.dtype)
    return out.index_add_(0, seg, src)
def _pad(x, pw):
    flat = tuple(v for pair in reversed(pw) for v in pair)
    return torch.nn.functional.pad(x, flat)

kernel_name = 'parallel_sum__compressed_kv_cla__dense_activation_relu__prompt'

def setup_inputs():

    _w = (lambda a: (lambda t: t.to(torch.bfloat16) if t.is_floating_point() else t)(torch.as_tensor(a)))
    def _A_setup():
        B, H, Sq, Sk, D, M = 1, 32, 2048, 2048, 128, 640
        Dc = 4 * D
        return {
            "x": _w((lambda *s: torch.randn(*s, dtype=torch.bfloat16) * 0.05)(B, Sq, M)),
            "c_kv": _w((lambda *s: torch.randn(*s, dtype=torch.bfloat16) * 1.6)(B, Sk, Dc)),
            "w_q": _w((lambda *s: torch.randn(*s, dtype=torch.bfloat16) * 0.8)(M, H, D) * (M ** -0.5)),
            "w_uk": _w((lambda *s: torch.randn(*s, dtype=torch.bfloat16) * 0.8)(Dc, H, D) * (Dc ** -0.5)),
            "w_uv": _w((lambda *s: torch.randn(*s, dtype=torch.bfloat16) * 1.6)(Dc, H, D) * (Dc ** -0.5)),
            "w_o": _w((lambda *s: torch.randn(*s, dtype=torch.bfloat16) * 1.6)(H, D, M) * ((H * D) ** -0.5)),
        }
    _A_in = _A_setup()

    def _B_setup():
        B, S, D, Dff = 1, 2048, 640, 1728
        return {
            "x": _w((lambda *s: torch.randn(*s, dtype=torch.bfloat16) * 0.05)(B, S, D)),
            "w1": _w((lambda *s: torch.randn(*s, dtype=torch.bfloat16) * 0.05)(D, Dff)),
            "w2": _w((lambda *s: torch.randn(*s, dtype=torch.bfloat16) * 0.05)(Dff, D)),
        }
    _B_in = _B_setup()

    return {
        "A_x": _A_in["x"],
        "A_c_kv": _A_in["c_kv"],
        "A_w_q": _A_in["w_q"],
        "A_w_uk": _A_in["w_uk"],
        "A_w_uv": _A_in["w_uv"],
        "A_w_o": _A_in["w_o"],
        "B_x": _B_in["x"],
        "B_w1": _B_in["w1"],
        "B_w2": _B_in["w2"],
    }

def reference(A_x, A_c_kv, A_w_q, A_w_uk, A_w_uv, A_w_o, B_x, B_w1, B_w2):
    def _A_ref(x, c_kv, w_q, w_uk, w_uv, w_o):
        B, Sq, M = x.shape[0], x.shape[1], x.shape[2]
        Sk = c_kv.shape[1]
        H, D = w_q.shape[1], w_q.shape[2]
        q = torch.einsum("bqm,mhd->bhqd", x, w_q)
        k = torch.einsum("bkc,chd->bhkd", c_kv, w_uk)
        v = torch.einsum("bkc,chd->bhkd", c_kv, w_uv)
        scores = torch.einsum("bhqd,bhkd->bhqk", q, k) * (D ** -0.5)
        off = Sk - Sq
        qi = torch.arange(Sq)[:, None]
        kj = torch.arange(Sk)[None, :]
        cmask = kj <= (qi + off)
        scores = torch.where(cmask[None, None], scores, -1e9)
        p = _softmax(scores, axis=-1)
        ctx = torch.einsum("bhqk,bhkd->bhqd", p, v)
        return torch.einsum("bhqd,hdm->bqm", ctx, w_o)

    def _B_ref(x, w1, w2):
        h = torch.einsum("bsd,df->bsf", x, w1)
        zero = torch.zeros_like(h)
        h = torch.maximum(h, zero)
        return torch.einsum("bsf,fd->bsd", h, w2)

    x = A_x
    xn = _layernorm(x, axis=-1)
    return x + _A_ref(xn, A_c_kv, A_w_q, A_w_uk, A_w_uv, A_w_o) + _B_ref(xn, B_w1, B_w2)
```

```python
import re

VEC_COST = {'valu': 1, 'trans': 2, 'ds': 1, 'dma': 2, 'vld': 2, 'vst': 3, 'dsw': 4, 'atom': 2, 'perm': 1}
SCALAR = ('salu', 'wait', 'nop')
VMEM = ('dma', 'vld', 'vst', 'atom')
DSK = ('ds', 'dsw')


def R(kind, a, n=1):
    return [f'{kind}{i}' for i in range(a, a + n)]


def rtxt(kind, a, n=1):
    return f'{kind}{a}' if n == 1 else f'{kind}[{a}:{a + n - 1}]'


class Reg:
    __slots__ = ('k', 'a', 'n')

    def __init__(self, k, a, n=1):
        self.k, self.a, self.n = k, a, n

    def __str__(self):
        return rtxt(self.k, self.a, self.n)

    def regs(self):
        return R(self.k, self.a, self.n)

    def __getitem__(self, i):
        if isinstance(i, slice):
            s = i.start or 0
            e = self.n if i.stop is None else i.stop
            assert 0 <= s < e <= self.n
            return Reg(self.k, self.a + s, e - s)
        assert 0 <= i < self.n, (self, i)
        return Reg(self.k, self.a + i, 1)


def V(a, n=1): return Reg('v', a, n)
def A(a, n=1): return Reg('a', a, n)
def S(a, n=1): return Reg('s', a, n)


def regs_of(x):
    if isinstance(x, Reg):
        return x.regs()
    if isinstance(x, str):
        if x in ('m0', 'vcc', 'scc', 'exec'):
            return [x]
        return []
    return []


class I:
    __slots__ = ('t', 'k', 'rd', 'wr', 'rel', 'dl', 'bb', 'idx', 'tag', 'srcC', 'passes', 'vm', 'lg', 'pos', 'preds',
                 'succs', 'done', 'cost', 'lat', 'slot', 'gp', 'bi')

    def __init__(self, t, k, rd=(), wr=(), rel=None, dl=None, bb=False, tag=None, slot=None):
        self.t, self.k = t, k
        self.rd, self.wr = list(rd), list(wr)
        self.rel, self.dl, self.bb, self.tag, self.slot = rel, dl, bb, tag, slot
        self.srcC = ()
        self.passes = 0
        self.vm = None
        self.lg = None
        self.cost = VEC_COST.get(k, 0)
        self.lat = None
        self.gp = None

    def __repr__(self):
        return self.t


def mfma(D, Aop, Bop, C):
    i = I(f'v_mfma_f32_16x16x32_bf16 {D}, {Aop}, {Bop}, {C}', 'mfma',
          rd=Aop.regs() + Bop.regs() + regs_of(C), wr=D.regs(), bb=True)
    i.srcC = tuple(regs_of(C))
    i.passes = 4
    return i


def mfma32(D, Aop, Bop, C):
    i = I(f'v_mfma_f32_32x32x16_bf16 {D}, {Aop}, {Bop}, {C}', 'mfma',
          rd=Aop.regs() + Bop.regs() + regs_of(C), wr=D.regs(), bb=True)
    i.srcC = tuple(regs_of(C))
    i.passes = 8
    return i


TRANS = ('v_exp_f32', 'v_rcp_f32', 'v_sqrt_f32', 'v_rsq_f32', 'v_log_f32')


def valu(op, D, *src, extra_rd=(), extra_wr=(), mod='', **kw):
    k = 'trans' if op in TRANS else 'valu'
    rd = []
    for s in src:
        rd += regs_of(s)
    if op in ('v_fmac_f32',):
        rd += regs_of(D)
    txt = f'{op} {D}, ' + ', '.join(str(s) for s in src) + (' ' + mod if mod else '')
    i = I(txt, k, rd=rd + list(extra_rd) + ['exec'], wr=regs_of(D) + list(extra_wr), **kw)
    return i


def vcmp(op, dst, a, b, **kw):
    return I(f'{op} {dst}, {a}, {b}', 'valu', rd=regs_of(a) + regs_of(b) + ['exec'], wr=regs_of(dst), **kw)


def cndmask(D, f, t, mask, **kw):
    return I(f'v_cndmask_b32 {D}, {f}, {t}, {mask}', 'valu', rd=regs_of(f) + regs_of(t) + regs_of(mask) + ['exec'],
             wr=D.regs(), **kw)


def permswap(op, a, b, **kw):
    return I(f'{op} {a}, {b}', 'perm', rd=a.regs() + b.regs() + ['exec'], wr=a.regs() + b.regs(), **kw)


def readfirst(sd, v):
    return I(f'v_readfirstlane_b32 {sd}, {v}', 'valu', rd=v.regs() + ['exec'], wr=sd.regs())


SCC_W = ('s_add_u32', 's_addc_u32', 's_sub_u32', 's_subb_u32', 's_and_b32', 's_or_b32', 's_xor_b32', 's_lshl_b32',
         's_lshr_b32', 's_and_b64', 's_or_b64', 's_min_u32', 's_max_u32', 's_add_i32', 's_sub_i32', 's_bfe_u32',
         's_andn2_b32', 's_not_b32')
SCC_R = ('s_addc_u32', 's_subb_u32', 's_cselect_b32', 's_cselect_b64')


def salu(op, D, *src, **kw):
    rd = []
    for s in src:
        rd += regs_of(s)
    wr = regs_of(D)
    if op in SCC_W:
        wr = wr + ['scc']
    if op in SCC_R:
        rd = rd + ['scc']
    return I(f'{op} {D}, ' + ', '.join(str(s) for s in src), 'salu', rd=rd, wr=wr, **kw)


def scmp(op, a, b, **kw):
    return I(f'{op} {a}, {b}', 'salu', rd=regs_of(a) + regs_of(b), wr=['scc'], **kw)


def ds_read(D, addr, off=0, op=None, tag=None, **kw):
    if op is None:
        op = {1: 'ds_read_b32', 2: 'ds_read_b64', 4: 'ds_read_b128'}[D.n]
    assert 0 <= off < 65536, off
    return I(f'{op} {D}, {addr}' + (f' offset:{off}' if off else ''), 'ds', rd=addr.regs() + ['LDSF', 'exec'],
             wr=D.regs(), tag=tag, **kw)


def ds_tr(D, addr, off=0, **kw):
    return ds_read(D, addr, off, op='ds_read_b64_tr_b16', **kw)


def ds_write(addr, Sx, off=0, tag=None, **kw):
    op = {1: 'ds_write_b32', 2: 'ds_write_b64', 4: 'ds_write_b128'}[Sx.n]
    assert 0 <= off < 65536, off
    return I(f'{op} {addr}, {Sx}' + (f' offset:{off}' if off else ''), 'dsw',
             rd=addr.regs() + Sx.regs() + ['LDSF', 'exec'], wr=[], tag=tag, **kw)


def swizzle(D, Sx, pat):
    return I(f'ds_swizzle_b32 {D}, {Sx} offset:{pat:#x}', 'ds', rd=Sx.regs() + ['exec'], wr=D.regs())


def _w(n): return {1: 'dword', 2: 'dwordx2', 4: 'dwordx4'}[n]


def dma(vaddr, srd, soff, off=0, flags='', tag=None, **kw):
    assert 0 <= off < 4096
    return I(f'buffer_load_dwordx4 {vaddr}, {srd}, {soff} offen' + (f' offset:{off}' if off else '') +
             (' ' + flags if flags else '') + ' lds', 'dma',
             rd=vaddr.regs() + srd.regs() + regs_of(soff) + ['m0', 'LDSF', 'VM', 'exec'], wr=['VM'], tag=tag, **kw)


def vload(D, vaddr, srd, soff, off=0, flags='', **kw):
    assert 0 <= off < 4096
    return I(f'buffer_load_{_w(D.n)} {D}, {vaddr}, {srd}, {soff} offen' + (f' offset:{off}' if off else '') +
             (' ' + flags if flags else ''), 'vld',
             rd=vaddr.regs() + srd.regs() + regs_of(soff) + ['VM', 'exec'], wr=D.regs() + ['VM'], **kw)


def vstore(Sx, vaddr, srd, soff, off=0, flags='', **kw):
    assert 0 <= off < 4096
    return I(f'buffer_store_{_w(Sx.n)} {Sx}, {vaddr}, {srd}, {soff} offen' + (f' offset:{off}' if off else '') +
             (' ' + flags if flags else ''), 'vst',
             rd=Sx.regs() + vaddr.regs() + srd.regs() + regs_of(soff) + ['VM', 'exec'], wr=['VM'], **kw)


def atomic_add(Sx, vaddr, srd, soff, off=0, flags='sc1', **kw):
    return I(f'buffer_atomic_add {Sx}, {vaddr}, {srd}, {soff} offen' + (f' offset:{off}' if off else '') +
             (' ' + flags if flags else ''), 'atom',
             rd=Sx.regs() + vaddr.regs() + srd.regs() + regs_of(soff) + ['VM', 'exec'], wr=['VM'], **kw)


def wait(vm=None, lg=None, bb=True, fence=False):
    parts = []
    if vm is not None:
        assert 0 <= vm <= 63
        parts.append(f'vmcnt({vm})')
    if lg is not None:
        assert 0 <= lg <= 15
        parts.append(f'lgkmcnt({lg})')
    rd, wr = [], []
    if vm is not None:
        rd.append('VM'); wr.append('VM')
    if fence:
        wr.append('LDSF')
    i = I('s_waitcnt ' + ' '.join(parts), 'wait', rd=rd, wr=wr, bb=bb)
    i.vm, i.lg = vm, lg
    return i


def barrier():
    return I('s_barrier', 'bar', wr=['LDSF'], bb=True)


def nop(n):
    i = I(f's_nop {n}', 'nop')
    i.lat = n + 1
    return i


def label(name):
    return I(f'{name}:', 'lab', bb=True)


def branch(op, target):
    rd = {'s_cbranch_scc0': ['scc'], 's_cbranch_scc1': ['scc'], 's_cbranch_vccz': ['vcc'], 's_cbranch_vccnz': ['vcc'],
          's_branch': [], 's_cbranch_execz': ['exec']}[op]
    return I(f'{op} {target}', 'br', rd=rd, bb=True)


def note(slot, content):
    i = I('', 'note', bb=True)
    i.tag = (slot, content)
    return i


def wait_for(L, needed, lg=None, fence=False):
    ids = {id(x) for x in needed}
    n = 0
    for i in reversed(L):
        if id(i) in ids:
            break
        if i.k in VMEM and i.tag != 'slow':
            n += 1
    else:
        raise AssertionError('needed instruction not in list')
    return wait(vm=n, lg=lg, fence=fence)


def glue(items, **kw):
    rd, wr = [], []
    for i in items:
        rd += [r for r in i.rd if r not in wr and r != 'scc']
        wr += [r for r in i.wr if r != 'scc']
    g = I('\n  '.join(i.t for i in items), 'salu', rd=rd, wr=wr, **kw)
    g.passes = len(items)
    return g


def raw(t, k='salu', rd=(), wr=(), **kw):
    return I(t, k, rd=rd, wr=wr, **kw)


def is_valu(i): return i.k in ('valu', 'trans', 'perm')


def hazard(p, c, r, typ):
    if r in ('VM', 'LDSF', 'scc', 'exec'):
        return 0
    if typ == 'RAW':
        if p.k == 'mfma':
            n4 = p.passes == 4
            if c.k == 'mfma':
                if r in c.srcC:
                    if tuple(p.wr) == tuple(c.srcC) and p.passes == c.passes:
                        ab = [x for x in c.rd if x not in c.srcC]
                        if r in ab:
                            return 8 if n4 else 12
                        return 0
                    return 6 if n4 else 10
                return 8 if n4 else 12
            return 8 if n4 else 12
        if is_valu(p):
            if r[0] in 'va' and r != 'vcc':
                if c.k == 'mfma':
                    return 2
                if c.k == 'perm':
                    return 2
                if c.t.startswith('v_readfirstlane') or c.t.startswith('v_readlane'):
                    return 1
                if ' row_' in c.t or 'quad_perm' in c.t:
                    return 2
                if p.k == 'trans' and is_valu(c) and c.k != 'trans':
                    return 1
                if p.k == 'trans' and c.k in VMEM + DSK:
                    return 1
                return 0
            if c.k in VMEM:
                return 5
            if is_valu(c):
                return 2
            if c.k in ('salu', 'br'):
                return 4
            return 0
        if p.k == 'salu' and r == 'm0' and c.k == 'dma':
            return 1
        return 0
    if typ == 'WAR':
        if p.k == 'mfma' and r in p.srcC and is_valu(c):
            return 3 if p.passes == 4 else 7
        if p.k == 'vst' and len([x for x in p.rd if x[0] in 'va']) >= 5 and r[0] in 'va':
            return 2
        return 0
    if typ == 'WAW':
        if p.k == 'mfma':
            if c.k == 'mfma':
                return 0 if p.passes == c.passes else (8 if p.passes == 4 else 12)
            return 8 if p.passes == 4 else 12
        return 0
    return 0


def build_deps(L):
    lastw = {}
    readers = {}
    for n, i in enumerate(L):
        i.idx = n
        i.preds = {}
        i.succs = {}
        i.done = False
    for i in L:
        assert i.bb or 'scc' not in i.rd, i
        for r in i.rd:
            if r == 'scc':
                continue
            p = lastw.get(r)
            if p is not None:
                d = hazard(p, i, r, 'RAW')
                _edge(p, i, d, 'RAW', r)
        for r in i.wr:
            if r == 'scc':
                continue
            p = lastw.get(r)
            if p is not None:
                _edge(p, i, hazard(p, i, r, 'WAW'), 'WAW', r)
            for q in readers.get(r, ()):
                if q is not i:
                    _edge(q, i, hazard(q, i, r, 'WAR'), 'WAR', r)
        for r in i.rd:
            readers.setdefault(r, []).append(i)
        for r in i.wr:
            lastw[r] = i
            readers[r] = []


def _edge(p, c, d, typ, r):
    raw_data = typ == 'RAW' and r not in ('VM', 'LDSF', 'scc', 'exec')
    o = c.preds.get(p.idx)
    if o is None:
        c.preds[p.idx] = [p, d, raw_data]
        p.succs[c.idx] = c
    else:
        o[1] = max(o[1], d)
        o[2] = o[2] or raw_data


DS_LAT = 9


def schedule(L, ds_lat=DS_LAT, verbose=None, budget=2):
    build_deps(L)
    bbs = [i for i in L if i.bb]
    for n, b in enumerate(bbs):
        b.bi = n
    g = 0
    for b in bbs:
        b.pos = g
        if b.k == 'mfma':
            g += 1
    ng = g
    BIG = ng + 1000
    for i in reversed(L):
        if i.bb:
            continue
        d = BIG if i.dl is None else i.dl
        for s in i.succs.values():
            e = s.preds[i.idx]
            if s.bb:
                m = s.pos - 1
                if e[2] and i.k == 'ds':
                    m -= ds_lat
                elif e[1] > 0:
                    m -= (e[1] + 1) // 2
            else:
                m = s.dl
                if e[2] and i.k == 'ds':
                    m -= ds_lat
                elif e[1] > 0 or True:
                    m -= 0.25
            d = min(d, m)
        i.dl = d
    out = []
    pend = []
    fill = [i for i in L if not i.bb]
    stats = {'forced': 0, 'nops': 0, 'waits_inline': 0, 'over': 0}

    def dist_ok(i):
        need = 0
        for p, d, _ in i.preds.values():
            if not p.done:
                return None
            if d:
                have = states_between(p)
                need = max(need, d - have)
        return need

    def states_between(p):
        return cur[0] - p.slot - 1

    cur = [0]

    def emit(i):
        i.done = True
        i.slot = cur[0]
        if i.k in ('lab', 'note') or i.tag == 'slow':
            i.slot = cur[0] - 1
        else:
            cur[0] += i.lat if i.k == 'nop' else 1
            i.slot = cur[0] - 1
        out.append(i)
        if i.k in DSK:
            pend.append(i)
        if i.k == 'wait' and i.lg is not None and i.tag != 'slow':
            del pend[:max(0, len(pend) - i.lg)]

    def lg_need(i):
        k = -1
        s = set(i.rd) | set(i.wr)
        for n, p in enumerate(pend):
            if p.k == 'ds' and s.intersection(p.wr):
                k = n
        return k

    def emit_checked(i):
        k = lg_need(i)
        if k >= 0:
            assert i.tag != 'slow'
            w = wait(lg=min(15, len(pend) - 1 - k), bb=False)
            w.preds = {}
            emit(w)
            stats['waits_inline'] += 1
        need = dist_ok(i)
        assert need is not None, i
        if need > 0:
            n = nop(need - 1)
            n.preds = {}
            if i.tag == 'slow':
                n.tag = 'slow'
            emit(n)
            stats['nops'] += 1
        emit(i)

    def force(i):
        for p, d, _ in sorted(i.preds.values(), key=lambda e: e[0].idx):
            if not p.done:
                assert not p.bb, (i, p)
                force(p)
                fill.remove(p)
                emit_checked(p)
                stats['forced'] += 1

    def ready(i, gap):
        if i.rel is not None and gap < i.rel:
            return False
        need = dist_ok(i)
        if need is None or need > 0:
            return False
        if lg_need(i) >= 0:
            return False
        return True

    for n, b in enumerate(bbs):
        force(b)
        emit_checked(b)
        if b.k != 'mfma':
            continue
        gap = b.pos
        nxt = None
        for x in bbs[n + 1:n + 4]:
            if x.k not in ('lab', 'note'):
                nxt = x
                break
        used_scalar = False
        if nxt is not None and nxt.k == 'mfma':
            k = lg_need(nxt)
            if k >= 0:
                while k + 1 < len(pend) and pend[k + 1].gp is not None and pend[k + 1].gp <= gap - ds_lat + 2:
                    k += 1
                w = wait(lg=min(15, len(pend) - 1 - k), bb=False)
                w.preds = {}
                emit(w)
                used_scalar = True
        scalar_next_bb = nxt is not None and nxt.k in ('wait', 'bar', 'br')
        if not used_scalar and not scalar_next_bb:
            c = [i for i in fill if i.k in SCALAR and ready(i, gap)]
            if c:
                i = min(c, key=lambda x: (x.dl, x.idx))
                fill.remove(i)
                emit(i)
        if scalar_next_bb:
            pass
        bud = budget
        chosen_valu = False
        while bud > 0:
            c = [i for i in fill if i.k not in SCALAR and ready(i, gap) and (i.cost <= bud or (i.cost > budget and bud == budget))
                 and not (chosen_valu and i.k not in ('valu', 'trans', 'perm'))]
            if len(pend) >= 14:
                c = [i for i in c if i.k not in DSK]
            if not c:
                break
            i = min(c, key=lambda x: (x.dl, x.idx))
            if i.k == 'valu' and bud == 2:
                m = [x for x in c if x.k == 'ds' and x.dl <= i.dl + 6]
                if m:
                    i = min(m, key=lambda x: (x.dl, x.idx))
            fill.remove(i)
            if i.k in DSK:
                i.gp = gap
            emit(i)
            bud -= i.cost
            if is_valu(i):
                chosen_valu = True
        while True:
            c = [i for i in fill if i.dl <= gap and ready(i, gap) and i.k in SCALAR]
            if not c:
                break
            i = min(c, key=lambda x: (x.dl, x.idx))
            fill.remove(i)
            emit(i)
            stats['over'] += 1
    for i in sorted(fill, key=lambda x: x.idx):
        emit_checked(i)
        stats['tail'] = stats.get('tail', 0) + 1
    exp = {}
    lw = None
    for i in L:
        if 'scc' in i.rd:
            exp[id(i)] = lw
        if 'scc' in i.wr:
            lw = i
    lw = None
    for i in out:
        if 'scc' in i.rd:
            assert exp[id(i)] is lw or exp[id(i)] is None, ('scc clobbered', i, lw)
        if 'scc' in i.wr or (i.k == 'salu' and i.passes > 1):
            lw = i
    if verbose:
        print(f'; sched {verbose}: {len(out)} instrs, {ng} mfma, {stats}, est cycles {estimate(out)}')
    return out


def linear(L):
    for i in L:
        i.bb = True
    return schedule(L)


def estimate(L):
    t = 0
    mf_free = 0
    vec_free = 0
    last_valu_end = -100
    for i in L:
        if i.k in ('lab', 'note') or i.tag == 'slow':
            continue
        if i.k == 'mfma':
            t = max(t, mf_free, vec_free)
            mf_free = t + 4 * i.passes
            vec_free = t + 8
            t += 4
        elif i.k in ('salu', 'wait', 'bar', 'br'):
            t += 4 * max(1, i.passes)
        elif i.k == 'nop':
            t += 4 * i.lat
        elif is_valu(i):
            t = max(t, vec_free)
            d = 8 if i.k == 'trans' else 4
            t += d
            vec_free = t
            last_valu_end = t
        else:
            t = max(t, vec_free, last_valu_end + 8)
            t += 4 * i.cost
            vec_free = t
    return max(t, mf_free)


def check_path(L, name='', fast=True):
    errs = []
    lastw = {}
    lastr = {}
    t = 0
    pend_ds = []
    pend_vm = []
    published = {}
    landed = {}
    read_since_bar = set()
    for i in L:
        if i.k == 'lab' or (i.tag == 'slow' and fast):
            continue
        if i.k == 'note':
            landed.setdefault(i.tag[0], set()).add(i.tag[1])
            if published.get(i.tag[0]) != i.tag[1]:
                published[i.tag[0]] = None
            if i.tag[0] in read_since_bar:
                errs.append(f'{name}: foreign DMA into slot {i.tag} noted after a read in the same interval')
            continue
        for r in i.rd:
            p = lastw.get(r)
            if p:
                d = hazard(p[0], i, r, 'RAW')
                if t - p[1] - 1 < d:
                    errs.append(f'{name}: RAW {r}: "{p[0]}" -> "{i}" has {t - p[1] - 1} < {d}')
        for r in i.wr:
            p = lastw.get(r)
            if p:
                d = hazard(p[0], i, r, 'WAW')
                if t - p[1] - 1 < d:
                    errs.append(f'{name}: WAW {r}: "{p[0]}" -> "{i}" has {t - p[1] - 1} < {d}')
            for q, tq in lastr.get(r, ()):
                d = hazard(q, i, r, 'WAR')
                if t - tq - 1 < d and q is not i:
                    errs.append(f'{name}: WAR {r}: "{q}" -> "{i}" has {t - tq - 1} < {d}')
        if i.k == 'mfma' and i.srcC and tuple(i.srcC) == tuple(i.wr):
            for r in i.srcC:
                p = lastw.get(r)
                if p is None or not (p[0].k == 'mfma' or p[0].tag == 'ci'):
                    errs.append(f'{name}: accumulator {r} of "{i}" last written by "{p and p[0]}"')
        s = (set(i.rd) | set(i.wr)) - {'VM', 'LDSF', 'exec'}
        for p in pend_ds:
            if p.k == 'ds' and s.intersection(p.wr):
                errs.append(f'{name}: LDS read not waited: "{p}" -> "{i}"')
        for p in pend_vm:
            if p.k == 'vld' and s.intersection(set(p.wr) - {'VM'}):
                errs.append(f'{name}: load not waited: "{p}" -> "{i}"')
        if i.k == 'wait':
            if i.lg is not None:
                del pend_ds[:max(0, len(pend_ds) - i.lg)]
            if i.vm is not None:
                k = max(0, len(pend_vm) - i.vm)
                for p in pend_vm[:k]:
                    if p.k == 'dma' and p.tag:
                        landed.setdefault(p.tag[0], set()).add(p.tag[1])
                del pend_vm[:k]
        if i.k in DSK:
            pend_ds.append(i)
            if len(pend_ds) > 64:
                errs.append(f'{name}: too many LDS ops outstanding')
        if i.k in VMEM:
            pend_vm.append(i)
            if len(pend_vm) > 63:
                errs.append(f'{name}: more than 63 vmem ops outstanding at "{i}"')
        if i.k == 'dma' and isinstance(i.tag, tuple):
            if i.tag[0] in read_since_bar:
                errs.append(f'{name}: DMA into slot {i.tag} that was read since the last barrier')
            if published.get(i.tag[0]) != i.tag[1]:
                published[i.tag[0]] = None
        if i.k == 'ds' and isinstance(i.tag, tuple):
            read_since_bar.add(i.tag[0])
            if i.tag[1] is not None and published.get(i.tag[0]) != i.tag[1]:
                errs.append(f'{name}: read of {i.tag} but slot holds {published.get(i.tag[0])}: "{i}"')
        if i.k == 'bar':
            for p in pend_ds:
                if p.tag:
                    errs.append(f'{name}: LDS op outstanding at barrier: "{p}"')
            still = {p.tag for p in pend_vm if p.k == 'dma' and p.tag}
            for sl, cs in list(landed.items()):
                for c in cs:
                    if (sl, c) not in still:
                        published[sl] = c
                landed[sl] = {c for c in cs if (sl, c) in still}
            read_since_bar = set()
        tt = t + (i.lat - 1 if i.k == 'nop' else 0)
        for r in i.rd:
            lastr.setdefault(r, []).append((i, tt))
            if len(lastr[r]) > 6:
                del lastr[r][0]
        for r in i.wr:
            lastw[r] = (i, tt)
            lastr[r] = []
        t = tt + 1
    return errs


def text(L):
    return '\n'.join(('' if i.k == 'lab' else '  ') + i.t for i in L if i.k != 'note') + '\n'
```

```python
import sys
import os
sys.path.insert(0, os.path.dirname(os.path.abspath(__file__)))
from core import *

NAME = 'parallel_sum__compressed_kv_cla__dense_activation_relu__prompt'
OPT = dict(stop=None, stamps=False, force_fb=False)

XN = 0x0000000
KV = 0x0400000
CH = 0x2400000
WP = 0x3C00000
CNT = 0x4400000
TS = 0x4500000
WS_BYTES = 0x10000000
OOB = 0x40000000
K1 = 1024

sWG = S(2)
sX, sC, sWKV, sWQ, sW1, sWR, sWS, sOUT, sDBG = (S(4 + 4 * i, 4) for i in range(9))
sW, sH, sP = S(40), S(41), S(42)
sT0, sT1, sSpin = S(43), S(44), S(45)
sB = [S(46 + i) for i in range(10)]
sRot = [S(56 + i) for i in range(4)]
sMask = [S(60 + 2 * i, 2) for i in range(4)]
sArg = 68
sJ, sRole, sNt, sRT2, sStamp = S(92), S(93), S(94), S(95), S(96)
sTm = S(98, 2)
_rot = [0]


def rot():
    _rot[0] = (_rot[0] + 1) % len(sRot)
    return sRot[_rot[0]]


def ptr(i): return S(sArg + 2 * i), S(sArg + 2 * i + 1)


vTid, vL16, vC0, vC1, vW, vW1 = V(0), V(1), V(2), V(3), V(4), V(5)
vX = [V(6), V(7)]
vY = [V(8 + i) for i in range(4)]
vWR, vYR, vSig, vOne = V(12), V(13), V(14), V(15)
vKV, vSigW, vT = V(2), V(3), V(4)

KV_W, KV_C = 0, 64 * K1
QH_W = 16 * K1
QH_R = 88 * K1
QX = 128 * K1
MX = 64 * K1 + 48 * K1

SCALE = 0x3E029434
import struct
_c = struct.unpack('<I', struct.pack('<f', 1.4426950408889634 / 128 ** 0.5))[0]
SCALE = _c
NEGBIG = 0xF149F2CA
LTHR = 0x4E800000


def srd(L, d, p, nbytes):
    L += [salu('s_mov_b32', d[0], p[0]), salu('s_and_b32', d[1], p[1], '0xffff'),
          salu('s_mov_b32', d[2], hex(nbytes)), salu('s_mov_b32', d[3], '0x20000')]


def stamp(L, n, t=None):
    if not OPT['stamps']:
        return
    t = t or V(29)
    L += [raw(f's_memtime {sTm}', wr=sTm.regs(), bb=True), wait(lg=0),
          valu('v_mov_b32', t, sTm[0], bb=True), salu('s_add_u32', sSpin, sStamp, 4 * n, bb=True),
          vstore(t, vSig, sWS, sSpin, bb=True)]


def poll_issue(L, srdx, soff, t, z, **kw):
    L.append(valu('v_mov_b32', z, 0))
    L.append(vload(t, z, srdx, soff, flags='sc1', **kw))
    return L[-1]


def poll(L, name, srdx, soff, target, t, z, sampled=False):
    lab = label(f'L_poll_{name}')
    lab.rd, lab.wr = ['VM', 'LDSF'], ['VM']
    n0 = len(L)
    if sampled:
        L += [readfirst(sT0, t), scmp('s_cmp_ge_u32', sT0, target), branch('s_cbranch_scc1', f'L_pd_{name}')]
        L[n0].rd += ['VM', 'LDSF']
        L[n0].wr += ['VM']
    L += [valu('v_mov_b32', z, 0), salu('s_mov_b32', sSpin, hex(400000)), lab,
          vload(t, z, srdx, soff, flags='sc1'), wait(vm=0), readfirst(sT0, t),
          scmp('s_cmp_ge_u32', sT0, target), branch('s_cbranch_scc1', f'L_pd_{name}'),
          raw('s_sleep 2'), salu('s_sub_u32', sSpin, sSpin, 1), scmp('s_cmp_lg_u32', sSpin, 0),
          branch('s_cbranch_scc1', f'L_poll_{name}'), label(f'L_pd_{name}')]
    for i in L[n0:]:
        i.bb = True
    if sampled:
        for i in L[n0 + 3:-1]:
            i.tag = 'slow'


def piece(L, vaddr, srdx, sbase, goff, slds, loff, tag=None, flags='', dl=None, rel=None):
    t = rot()
    L.append(salu('s_add_u32', 'm0', slds, hex(loff), rel=None if rel is None else rel - 2))
    L.append(salu('s_add_u32', t, sbase, hex(goff), rel=None if rel is None else rel - 2))
    d = dma(vaddr, srdx, t, tag=tag, flags=flags, dl=dl, rel=rel)
    L.append(d)
    return d


def gen_init():
    L = []
    L += [scmp('s_cmp_ge_u32', sWG, 256), branch('s_cbranch_scc1', 'L_end')]
    L += [raw(f's_load_dwordx16 s[{sArg}:{sArg + 15}], s[0:1], 0', wr=R('s', sArg, 16)),
          raw(f's_load_dwordx8 s[{sArg + 16}:{sArg + 23}], s[0:1], 64', wr=R('s', sArg + 16, 8))]
    lane, t0, t1, t2, t3 = V(16), V(17), V(18), V(19), V(20)
    L += [valu('v_lshrrev_b32', t0, 6, vTid), valu('v_and_b32', lane, 63, vTid), readfirst(sW, t0),
          valu('v_lshlrev_b32', vL16, 4, lane)]
    L += [salu('s_and_b32', sT0, sWG, 7), salu('s_lshl_b32', sT0, sT0, 2), salu('s_lshr_b32', sT1, sWG, 3),
          salu('s_and_b32', sT1, sT1, 3), salu('s_add_u32', sH, sT0, sT1), salu('s_lshr_b32', sP, sWG, 5)]
    L += [valu('v_lshrrev_b32', t0, 3, lane), valu('v_and_b32', t1, 7, lane), valu('v_lshrrev_b32', t2, 4, lane),
          valu('v_xor_b32', t3, t1, t2), valu('v_lshlrev_b32', t3, 4, t3), valu('v_lshl_add_u32', vC0, t0, 10, t3),
          valu('v_xor_b32', vC1, 64, vC0)]
    L += [valu('v_lshlrev_b32', t2, 1, t2), valu('v_xor_b32', t3, t1, t2), valu('v_lshlrev_b32', t3, 4, t3),
          valu('v_and_b32', t1, 3, t0), valu('v_lshrrev_b32', t2, 2, t0), valu('v_lshl_add_u32', t1, t2, 3, t1),
          valu('v_lshl_add_u32', vW, t1, 13, t3),
          valu('v_mul_u32_u24', t1, 3456, t1), valu('v_add_u32', vW1, t1, t3),
          valu('v_mul_u32_u24', t1, 1280, t0), valu('v_add_u32', vWR, t1, t3)]
    wr_, wc_ = sB[8], sB[9]
    L += [salu('s_lshr_b32', wr_, sW, 1), salu('s_and_b32', wc_, sW, 1)]
    L += [valu('v_and_b32', t0, 15, lane), valu('v_lshrrev_b32', t1, 4, lane), valu('v_lshrrev_b32', t2, 1, t0),
          valu('v_xor_b32', t2, t1, t2), valu('v_lshlrev_b32', t2, 4, t2), valu('v_lshl_add_u32', t2, t0, 7, t2),
          salu('s_lshl_b32', sT0, wr_, 14), salu('s_add_u32', sT0, sT0, hex(KV_C)),
          valu('v_add_u32', vX[0], sT0, t2), valu('v_xor_b32', vX[1], 64, vX[0])]
    L += [valu('v_bfe_u32', t0, lane, 2, 3),
          valu('v_lshrrev_b32', t1, 5, lane),
          valu('v_and_b32', t2, 3, lane), valu('v_lshlrev_b32', t2, 3, t2),
          valu('v_lshl_add_u32', t2, t0, 7, t2), valu('v_lshl_add_u32', t2, t1, 11, t2),
          valu('v_lshrrev_b32', t0, 1, t0)]
    L += [salu('s_lshl_b32', sT0, wc_, 13)]
    for cb in range(4):
        L += [valu('v_xor_b32', t1, cb, t0), valu('v_lshl_add_u32', t1, t1, 5, t2), valu('v_add_u32', vY[cb], sT0, t1)]
    L += [valu('v_xor_b32', t1, sW, t0), valu('v_lshl_add_u32', t1, t1, 5, t2),
          valu('v_add_u32', vYR, hex(QH_R), t1)]
    L += [valu('v_mov_b32', vOne, 1), valu('v_mov_b32', t0, hex(OOB)), vcmp('v_cmp_eq_u32', 'vcc', 0, vTid),
          cndmask(vSig, t0, 0, 'vcc')]
    L[-1].t = f'v_cndmask_b32 {vSig}, {t0}, 0, vcc'.replace('v_cndmask_b32', 'v_cndmask_b32_e64')
    L += [wait(lg=0)]
    srd(L, sX, ptr(0), 2621440)
    srd(L, sC, ptr(1), 2097152)
    srd(L, sWQ, ptr(2), 5242880)
    srd(L, sW1, ptr(7), 2211840)
    srd(L, sOUT, ptr(9), 2621440)
    srd(L, sDBG, ptr(10), 256)
    srd(L, sWS, ptr(11), WS_BYTES)
    L += [scmp('s_cmp_lt_u32', sW, 2), salu('s_cselect_b32', sWKV[0], ptr(3)[0], ptr(4)[0]),
          salu('s_cselect_b32', sWKV[1], ptr(3)[1], ptr(4)[1]), salu('s_and_b32', sWKV[1], sWKV[1], '0xffff'),
          salu('s_mov_b32', sWKV[2], hex(4194304)), salu('s_mov_b32', sWKV[3], '0x20000')]
    L += [scmp('s_cmp_lt_u32', sWG, 128), salu('s_cselect_b32', sWR[0], ptr(5)[0], ptr(8)[0]),
          salu('s_cselect_b32', sWR[1], ptr(5)[1], ptr(8)[1]),
          salu('s_cselect_b32', sWR[2], hex(5242880), hex(2211840)),
          salu('s_and_b32', sWR[1], sWR[1], '0xffff'), salu('s_mov_b32', sWR[3], '0x20000')]
    L[-3].t = f's_mov_b32 {sWR[2]}, {hex(2211840)}'
    L.insert(len(L) - 2, raw(f's_cmov_b32 {sWR[2]}, {hex(5242880)}', rd=['scc'] + sWR[2].regs(), wr=sWR[2].regs()))
    if OPT['stamps']:
        L += [salu('s_lshl_b32', sStamp, sWG, 7), salu('s_add_u32', sStamp, sStamp, hex(TS)),
              ]
    stamp(L, 0)
    xa = V(21)
    row = V(22)
    L += [salu('s_lshl_b32', sT0, sWG, 3), salu('s_lshl_b32', sT1, sW, 1), salu('s_add_u32', sT0, sT0, sT1),
          valu('v_lshrrev_b32', row, 5, lane), valu('v_add_u32', row, sT0, row),
          valu('v_mul_u32_u24', xa, 1280, row), valu('v_and_b32', t0, 31, lane), valu('v_lshl_add_u32', xa, t0, 4, xa)]
    xr = [V(32 + 4 * n, 4) for n in range(3)]
    lnl = [vload(xr[n], xa, sX, 0, off=512 * n) for n in range(3)]
    L += lnl
    cB, wB, lC, lW, kvS = sB[0], sB[1], sB[2], sB[3], sB[4]
    L += [salu('s_lshl_b32', cB, sP, 18), salu('s_lshl_b32', sT0, sW, 16), salu('s_add_u32', cB, cB, sT0),
          salu('s_lshl_b32', wB, sH, 8), salu('s_lshl_b32', sT0, wc_, 7), salu('s_add_u32', wB, wB, sT0),
          salu('s_lshl_b32', lW, sW, 13), salu('s_add_u32', lC, lW, hex(KV_C)),
          salu('s_lshl_b32', kvS, sH, 20), salu('s_lshl_b32', sT0, sP, 17), salu('s_add_u32', kvS, kvS, sT0),
          salu('s_lshl_b32', sT0, wr_, 16), salu('s_add_u32', kvS, kvS, sT0), salu('s_add_u32', kvS, kvS, hex(KV))]
    kv_dma_c(L, 0)
    kv_dma_w(L, 0)
    kv_dma_w(L, 1)
    L += [valu('v_mov_b32', t0, 0), salu('s_lshl_b32', sT0, sWG, 8), salu('s_add_u32', sT0, sT0, hex(CNT)),
          scmp('s_cmp_lt_u32', sWG, 41), salu('s_cselect_b32', sT0, sT0, hex(OOB)),
          vstore(t0, vSig, sWS, sT0, flags='sc1')]
    L.append(wait_for(L, lnl))
    e = [V(48 + i) for i in range(24)]
    acc, tmp = V(44), V(45)
    half = [raw('s_mov_b32 exec_lo, 0xffff', wr=['exec']), raw('s_mov_b32 exec_hi, 0xffff', wr=['exec'])]
    full = [raw('s_mov_b64 exec, -1', wr=['exec'])]

    def cp(x): return [raw(i.t, wr=['exec']) for i in x]
    for n in range(3):
        for d in range(4):
            L += [valu('v_lshlrev_b32', e[8 * n + 2 * d], 16, xr[n][d]),
                  valu('v_and_b32', e[8 * n + 2 * d + 1], '0xffff0000', xr[n][d])]
    L.append(valu('v_add_f32', acc, e[0], e[1]))
    for i in range(2, 16):
        L.append(valu('v_add_f32', acc, acc, e[i]))
    L += cp(half)
    for i in range(16, 24):
        L.append(valu('v_add_f32', acc, acc, e[i]))
    L += cp(full)

    def reduce32(a):
        for x in (1, 2, 4, 8, 16):
            L.append(swizzle(tmp, a, (x << 10) | 0x1f))
            L.append(valu('v_add_f32', a, a, tmp))
    reduce32(acc)
    mean, sq, dd = V(46), V(47), V(72)
    inv640 = hex(struct.unpack('<I', struct.pack('<f', 1.0 / 640))[0])
    L += [valu('v_mul_f32', mean, inv640, acc), valu('v_mov_b32', sq, 0)]
    for i in range(24):
        if i == 16:
            L += cp(half)
        L += [valu('v_sub_f32', dd, e[i], mean), valu('v_fmac_f32', sq, dd, dd)]
    L += cp(full)
    reduce32(sq)
    mb, sd, rs = V(73), V(74), V(75)
    eps = hex(struct.unpack('<I', struct.pack('<f', 1e-5))[0])
    L += [valu('v_mul_f32', sq, inv640, sq), valu('v_cvt_pk_bf16_f32', tmp, mean, sq),
          valu('v_lshlrev_b32', mb, 16, tmp), valu('v_and_b32', sq, '0xffff0000', tmp),
          valu('v_add_f32', sq, eps, sq), valu('v_cvt_pk_bf16_f32', tmp, sq, sq), valu('v_lshlrev_b32', sq, 16, tmp),
          valu('v_sqrt_f32', sd, sq), valu('v_cvt_pk_bf16_f32', tmp, sd, sd), valu('v_lshlrev_b32', sd, 16, tmp),
          valu('v_rcp_f32', rs, sd)]
    q0, q1, r0, r1 = V(76), V(77), V(78), V(79)
    for n in range(3):
        for d in range(4):
            a, b = e[8 * n + 2 * d], e[8 * n + 2 * d + 1]
            L += [valu('v_sub_f32', a, a, mb), valu('v_sub_f32', b, b, mb), valu('v_cvt_pk_bf16_f32', tmp, a, b),
                  valu('v_lshlrev_b32', a, 16, tmp), valu('v_and_b32', b, '0xffff0000', tmp),
                  valu('v_mul_f32', q0, a, rs), valu('v_mul_f32', q1, b, rs),
                  raw(f'v_fma_f32 {r0}, -{q0}, {sd}, {a}', 'valu', rd=['v76', 'v74'] + a.regs(), wr=['v78']),
                  raw(f'v_fma_f32 {r1}, -{q1}, {sd}, {b}', 'valu', rd=['v77', 'v74'] + b.regs(), wr=['v79']),
                  valu('v_fmac_f32', q0, r0, rs), valu('v_fmac_f32', q1, r1, rs),
                  valu('v_cvt_pk_bf16_f32', xr[n][d], q0, q1)]
    L += [valu('v_lshrrev_b32', t0, 6, row), valu('v_mul_u32_u24', t0, 20, t0), valu('v_bfe_u32', t1, lane, 2, 3),
          valu('v_add_u32', t0, t0, t1), valu('v_bfe_u32', t1, row, 4, 2), valu('v_lshl_add_u32', t0, t0, 2, t1),
          valu('v_and_b32', t1, 3, lane), valu('v_and_b32', t2, 15, row), valu('v_lshl_add_u32', t1, t1, 4, t2),
          valu('v_lshlrev_b32', t1, 4, t1), valu('v_lshl_add_u32', t0, t0, 10, t1)]
    L += [salu('s_mov_b32', sT0, hex(XN)), vstore(xr[0], t0, sWS, sT0, flags='sc1'),
          salu('s_mov_b32', sT1, hex(XN + 32768)), vstore(xr[1], t0, sWS, sT1, flags='sc1')]
    L += cp(half)
    L += [salu('s_mov_b32', sT0, hex(XN + 65536)), vstore(xr[2], t0, sWS, sT0, flags='sc1')]
    L += cp(full)
    return linear(L)


def kv_dma_c(L, s, g0=None):
    out = []
    for q in range(8):
        out.append(piece(L, vC1 if q & 1 else vC0, sC, sB[0], q * 8192 + s * 128, sB[2], (s & 1) * 32 * K1 + q * K1,
                         tag=(f'c{s & 1}', s), dl=None if g0 is None else g0 + 4 + 4 * q))
    return out


def kv_dma_w(L, s, g0=None):
    out = []
    for q in range(8):
        ks, m, hf = q >> 2, (q >> 1) & 1, q & 1
        out.append(piece(L, vW, sWKV, sB[1], (64 * s + 32 * ks + 16 * m + 4 * hf) * 8192, sB[3],
                         (s & 1) * 32 * K1 + q * K1, tag=(f'w{s & 1}', s),
                         dl=None if g0 is None else g0 + 36 + 4 * q))
    return out


def kv_acc(i, jj):
    return A(4 * jj, 4) if i == 0 else V(32 + ((i - 1) * 8 + jj) * 4, 4)


def kv_Y(par, jj, ks): return A(32 + 64 * par + (jj * 2 + ks) * 4, 4)
def kv_X(n, ks): return A(160 + 8 * (n % 3) + 4 * ks, 4)


def kv_readY(L, s, g0=None):
    n = 0
    for jj in range(8):
        for ks in range(2):
            for hf in range(2):
                off = (s & 1) * 32 * K1 + (16 * K1 if jj >= 4 else 0) + ks * 4096 + hf * K1
                L.append(ds_tr(kv_Y(s & 1, jj, ks)[2 * hf:2 * hf + 2], vY[jj & 3], off, tag=(f'w{s & 1}', s),
                               rel=None if g0 is None else g0 + 16 + 3 * n))
                n += 1


def kv_readX(L, s, i):
    for ks in range(2):
        L.append(ds_read(kv_X(s * 8 + i, ks), vX[ks], (s & 1) * 32 * K1 + i * 2048, tag=(f'c{s & 1}', s)))


def kv_mfma(L, s, i):
    for jj in range(8):
        for ks in range(2):
            acc = kv_acc(i, jj)
            c = 0 if (s == 0 and ks == 0) else acc
            x, y = kv_X(s * 8 + i, ks), kv_Y(s & 1, jj, ks)
            L.append(mfma(acc, y, x, c) if jj < 4 else mfma(acc, x, y, c))


_tset = [0]


def pack2(L, b0, b1):
    if b0.k == 'a' or b1.k == 'a':
        _tset[0] ^= 1
        t = V(16 + 8 * _tset[0], 8)
        s0, s1 = b0, b1
        if b0.k == 'a':
            for r in range(4):
                L.append(valu('v_accvgpr_read_b32', t[r], b0[r]))
            s0 = t[0:4]
        if b1.k == 'a':
            for r in range(4):
                L.append(valu('v_accvgpr_read_b32', t[4 + r], b1[r]))
            s1 = t[4:8]
        d = t[0:4]
    else:
        s0, s1, d = b0, b1, b0
    L += [valu('v_cvt_pk_bf16_f32', d[0], s0[0], s0[1]), valu('v_cvt_pk_bf16_f32', d[1], s0[2], s0[3]),
          valu('v_cvt_pk_bf16_f32', d[2], s1[0], s1[1]), valu('v_cvt_pk_bf16_f32', d[3], s1[2], s1[3])]
    return d


def kv_epi(L, u):
    st = []
    for i in (2 * u, 2 * u + 1):
        t = rot()
        L.append(salu('s_add_u32', t, sB[5], hex((i >> 2) * 32 * K1 + (i & 3) * 4 * K1)))
        for dcl in range(2):
            d = pack2(L, kv_acc(i, 2 * dcl), kv_acc(i, 2 * dcl + 1))
            st.append(vstore(d, vL16, sWS, t, off=dcl * K1, flags='sc1'))
            L.append(st[-1])
    for jp in range(2):
        t = rot()
        L.append(salu('s_add_u32', t, sB[6], hex((u >> 1) * 32 * K1 + (u & 1) * K1 + jp * 4 * K1)))
        for x in range(2):
            jj = 4 + 2 * jp + x
            d = pack2(L, kv_acc(2 * u, jj), kv_acc(2 * u + 1, jj))
            st.append(vstore(d, vL16, sWS, t, off=x * 2 * K1, flags='sc1'))
            L.append(st[-1])
    return st


def qh_acc(jj, qb): return V(32 + (jj * 4 + qb) * 4, 4)
def qh_xn(s, ks, qb): return A((208, 32, 64)[s % 3] + (ks * 4 + qb) * 4, 4)


def qh_W(n, ks):
    if n >= 9 * 12:
        return V(224 + 8 * (n % 4) + 4 * ks, 4)
    return A((184, 192, 200, 240, 248)[n % 5] + 4 * ks, 4)


def aO(db, qb): return A((db * 4 + qb) * 4, 4)
def aL(qb): return A(128 + 4 * qb, 4)
def aQ(qb, dc): return A(144 + (qb * 4 + dc) * 4, 4)
def aF(n): return A(208 + 4 * (n % 12), 4)


def qh_setup(L):
    L += [salu('s_sub_u32', sT0, 15, sP), salu('s_lshl_b32', sT0, sT0, 1), salu('s_lshl_b32', sT1, sP, 1),
          glue([scmp('s_cmp_lt_u32', sW, 2), salu('s_cselect_b32', sRT2, sT0, sT1)]),
          salu('s_and_b32', sT0, sW, 1), salu('s_add_u32', sRT2, sRT2, sT0),
          salu('s_mul_i32', sB[0], sRT2, 20 * 4096),
          salu('s_lshl_b32', sB[1], sH, 8), salu('s_lshr_b32', sT1, sW, 1), salu('s_lshl_b32', sT1, sT1, 7),
          salu('s_add_u32', sB[1], sB[1], sT1), salu('s_lshl_b32', sT0, sT0, 18), salu('s_add_u32', sB[1], sB[1], sT0),
          salu('s_lshl_b32', sB[3], sW, 12), salu('s_add_u32', sB[3], sB[3], hex(QH_W)),
          salu('s_mul_i32', sB[2], sW, 16 * 3456), salu('s_lshl_b32', sT0, sH, 7), salu('s_add_u32', sB[2], sB[2], sT0),
          glue([scmp('s_cmp_lt_u32', sH, 27), salu('s_cselect_b32', sB[2], sB[2], hex(OOB))]),
          salu('s_lshl_b32', sB[7], sW, 11), salu('s_add_u32', sB[7], sB[7], hex(QH_W + 16 * K1))]
    if XN:
        L.append(salu('s_add_u32', sB[0], sB[0], hex(XN)))


def qh_loads(L, s, g0=None):
    out = []
    sl = (s % 3) * 24 * K1
    n = 0
    for m in range(2):
        for hf in range(2):
            out.append(piece(L, vW, sWQ, sB[1], (64 * s + 16 * m + 4 * hf) * 8192, sB[3], sl + (m * 2 + hf) * K1,
                             tag=(f'q{s % 3}', s), dl=None if g0 is None else g0 + 10 + 5 * n))
            n += 1
    for hf in range(2):
        out.append(piece(L, vW1, sW1, sB[2], (64 * s + 4 * hf) * 3456, sB[7], sl + hf * K1, tag=(f'q{s % 3}', s),
                         dl=None if g0 is None else g0 + 10 + 5 * n))
        n += 1
    for ks in range(2):
        t = rot()
        L.append(salu('s_add_u32', t, sB[0], hex((2 * s + ks) * 4096)))
        for qb in range(4):
            out.append(vload(qh_xn(s, ks, qb), vL16, sWS, t, off=qb * K1, flags='sc1',
                             dl=None if g0 is None else g0 + 10 + 5 * n))
            L.append(out[-1])
            n += 1
    return out


def qh_readW(L, s, jj):
    for ks in range(2):
        for hf in range(2):
            off = QH_W + (s % 3) * 24 * K1 + (jj >> 2) * 8 * K1 + ks * 4096 + hf * K1
            ad = vYQ[jj & 3]
            if off >= 48 * K1:
                off -= 48 * K1
                ad = vY[jj & 3]
            L.append(ds_tr(qh_W(s * 12 + jj, ks)[2 * hf:2 * hf + 2], ad, off, tag=(f'q{s % 3}', s)))


vYQ = [V(6), V(7), V(2), V(3)]


def qh_mfma(L, s, jj):
    for qb in range(4):
        for ks in range(2):
            acc = qh_acc(jj, qb)
            L.append(mfma(acc, qh_W(s * 12 + jj, ks), qh_xn(s, ks, qb), 0 if (s == 0 and ks == 0) else acc))


def qh_epi_q(L, dc):
    for qb in range(4):
        b0, b1 = qh_acc(2 * dc, qb), qh_acc(2 * dc + 1, qb)
        for b in (b0, b1):
            for r in range(4):
                L.append(valu('v_mul_f32', b[r], hex(SCALE), b[r]))
        d = pack2(L, b0, b1)
        for r in range(4):
            L.append(valu('v_accvgpr_write_b32', aQ(qb, dc)[r], d[r]))
        L.append(ds_write(vQX, d, (qb * 4 + dc) * K1))


vQX = V(5)


def qh_epi_h(L, fc):
    st = []
    t = rot()
    L.append(salu('s_add_u32', t, sB[4], hex(fc * 4096)))
    for qb in range(4):
        d = pack2(L, qh_acc(8 + 2 * fc, qb), qh_acc(9 + 2 * fc, qb))
        for r in range(4):
            L.append(valu('v_pk_max_i16', d[r], d[r], 0))
        st.append(vstore(d, vL16, sWS, t, off=qb * K1, flags='sc1'))
        L.append(st[-1])
    return st


def relayout_dma(L, g0):
    L += [salu('s_and_b32', sT0, sWG, 127), salu('s_mul_i32', sB[8], sT0, 32 * 1280),
          salu('s_and_b32', sT0, sW, 1), salu('s_mul_i32', sT0, sT0, 16 * 1280), salu('s_add_u32', sB[8], sB[8], sT0),
          salu('s_lshr_b32', sT0, sW, 1), salu('s_mul_i32', sT0, sT0, 8 * 1280), salu('s_add_u32', sB[8], sB[8], sT0),
          glue([scmp('s_cmp_lt_u32', sWG, 182), salu('s_cselect_b32', sB[8], sB[8], hex(OOB))]),
          salu('s_lshl_b32', sB[9], sW, 10), salu('s_add_u32', sB[9], sB[9], hex(QH_R))]
    out = []
    for cg in range(10):
        out.append(piece(L, vWR, sWR, sB[8], cg * 128, sB[9], cg * 4096, tag=('r', 0), dl=g0 + 80 + cg))
    return out


def relayout_out(L, g0):
    L += [salu('s_mul_i32', sB[8], sWG, 5 * K1), salu('s_add_u32', sB[8], sB[8], hex(WP)),
          glue([scmp('s_cmp_lt_u32', sWG, 182), salu('s_cselect_b32', sB[8], sB[8], hex(OOB))])]
    st = []
    for cg in range(10):
        d = A(96 + 4 * cg, 4)
        for hf in range(2):
            L.append(ds_tr(d[2 * hf:2 * hf + 2], vYR, cg * 4096 + hf * K1, tag=('r', 0), rel=g0 + 8 * cg))
        t = rot()
        L += [salu('s_add_u32', sB[9], sW, 4 * cg), salu('s_mul_i32', t, sB[9], 205), salu('s_lshr_b32', t, t, 10),
              salu('s_mul_i32', t, t, 905), salu('s_add_u32', t, t, sB[9]), salu('s_lshl_b32', t, t, 10),
              salu('s_add_u32', t, t, sB[8])]
        st.append(vstore(d, vL16, sWS, t, flags='sc1'))
        L.append(st[-1])
    return st


def gen_proj():
    L = []
    L += [salu('s_lshl_b32', sT0, sB[9], 11), salu('s_add_u32', sB[5], sB[4], sT0),
          salu('s_lshl_b32', sT0, sB[9], 13), salu('s_add_u32', sB[6], sB[4], sT0),
          salu('s_add_u32', sB[6], sB[6], hex(16 * K1))]
    for i in L:
        i.bb = True
    L += [wait(vm=0, lg=0, fence=True), barrier()]
    stamp(L, 1)
    L.append(atomic_add(vOne, vSig, sDBG, 0, bb=True))
    n0 = len(L)
    kv_readY(L, 0)
    for k, i in enumerate(L[n0:]):
        i.bb = True
    L += [wait(lg=0, fence=True), barrier()]
    g = 0
    pend_st = []
    for s in range(8):
        if s:
            L += [wait(vm=0, lg=0, fence=True), barrier()]
        if s == 7:
            poll(L, 'A', sDBG, 0, 256, V(30), V(31), sampled=True)
        kv_readX(L, s, 0)
        if s:
            kv_mfma(L, s - 1, 7)
            g += 16
        g0 = g - (16 if s else 0)
        if s + 1 < 8:
            kv_dma_c(L, s + 1, g0)
        if s + 2 < 8:
            kv_dma_w(L, s + 2, g0)
        if s + 1 < 8:
            kv_readY(L, s + 1, g0)
        if s == 6:
            poll_issue(L, sDBG, 0, V(30), V(31), rel=g0 + 60)
        if s == 7:
            qh_setup(L)
            ld = {0: qh_loads(L, 0, g0 - 6), 1: qh_loads(L, 1, g0 + 30)}
        for i in range(7):
            kv_readX(L, s, i + 1)
            kv_mfma(L, s, i)
            g += 16
            if s == 7 and i in (1, 3, 5):
                pend_st += kv_epi(L, i >> 1)
    L.append(salu('s_lshl_b32', sT1, sB[9], 13))
    for cb in range(4):
        L.append(valu('v_subrev_u32', vYQ[cb], sT1, vY[cb]))
        L.append(valu('v_add_u32', vY[cb], hex(48 * K1), vYQ[cb]))
    sig_b = None
    for s in range(10):
        L += [wait_for(L, ld[s] + ([smp] if s == 9 else []), lg=0, fence=True), barrier()]
        if s == 0:
            stamp(L, 2)
        if s == 2:
            L += [salu('s_lshl_b32', sT1, sH, 8), salu('s_add_u32', sT1, sT1, hex(CNT)),
                  atomic_add(vOne, vSig, sWS, sT1)]
        qh_readW(L, s, 0)
        qh_readW(L, s, 1)
        if s == 0:
            kv_mfma(L, 7, 7)
            g0 = g
            g += 16
            pend_st += kv_epi(L, 3)
        else:
            qh_mfma(L, s - 1, 11)
            g0 = g
            g += 8
        if s + 2 < 10:
            ld[s + 2] = qh_loads(L, s + 2, g0)
        if s == 2:
            relayout_dma(L, g0)
        if s == 5:
            relayout_out(L, g0 + 10)
        if s == 8:
            L += [salu('s_mul_i32', sB[4], sRT2, 182 * 4096), salu('s_lshl_b32', sT1, sH, 13),
                  salu('s_add_u32', sB[4], sB[4], sT1), salu('s_add_u32', sB[4], sB[4], hex(CH + 128 * 4096)),
                  glue([scmp('s_cmp_lt_u32', sH, 27), salu('s_cselect_b32', sB[4], sB[4], hex(OOB))]),
                  salu('s_lshl_b32', sT1, sW, 14), salu('s_add_u32', sT1, sT1, hex(QX)),
                  valu('v_add_u32', vQX, sT1, vL16),
                  salu('s_lshl_b32', sB[7], sH, 8), salu('s_add_u32', sB[7], sB[7], hex(CNT))]
            smp = poll_issue(L, sWS, sB[7], V(30), V(31), rel=g0 + 40)
        if s == 9:
            att_setup(L, g)
            poll_pos = len(L)
        for jj in range(11):
            if jj + 2 < 12:
                qh_readW(L, s, jj + 2)
            qh_mfma(L, s, jj)
            g += 8
            if s == 9 and jj in (1, 3, 5, 7):
                qh_epi_q(L, jj >> 1)
            if s == 9 and jj == 9:
                qh_epi_h(L, 0)
    qh_mfma(L, 9, 11)
    qh_epi_h(L, 1)
    return schedule(L, verbose='proj')


def vS(par, kvb, qb): return V(16 + 64 * par + (kvb * 4 + qb) * 4, 4)
def vP(par, qb, kc): return V(144 + 32 * par + (qb * 2 + kc) * 4, 4)
def vNM(qb): return V(208 + 4 * qb, 4)


vOnes = V(224, 4)
vTmp = V(228, 24)
sHB, sVsrc, sKsrc, sLd = sB[0], sB[1], sB[2], sB[3]
sCtx = sB[5]


def att_setup(L, g0):
    poll(L, 'B', sWS, sB[7], 8, V(30), V(31), sampled=True)
    L += [salu('s_lshl_b32', sHB, sH, 20), salu('s_add_u32', sHB, sHB, hex(KV)),
          salu('s_lshl_b32', sT1, sW, 12), salu('s_add_u32', sKsrc, sHB, sT1), salu('s_mov_b32', 'm0', sT1)]
    for q in range(4):
        L.append(dma(vL16, sWS, sKsrc, off=q * K1, flags='sc1', tag=('K00', 't0'), dl=g0 + 12 + 2 * q))


def att_dma(L, par, which='VK', stream=None, g0=4, step=4, tags=(None, None), both=False):
    n = 0
    for what, src, lds, tg in (('V', sVsrc, 32 * K1 + par * 16 * K1, tags[0]), ('K', sKsrc, (par ^ 1) * 16 * K1, tags[1])):
        if what not in which:
            continue
        for grp in range(4 if both else 2):
            t = rot()
            L += [salu('s_add_u32', 'm0', sLd, hex(lds + grp * 4 * K1)), salu('s_add_u32', t, src, hex(grp * 4 * K1))]
            for q in range(4):
                L.append(dma(vL16, sWS, t, off=q * K1, flags='sc1', tag=tg, dl=g0 + step * n))
                n += 1
        L.append(salu('s_add_u32', src, src, hex(32 * K1)))


def readK(L, par, kvb, dc, tag):
    L.append(ds_read(aF(kvb * 4 + dc), vKV, par * 16 * K1 + (kvb * 4 + dc) * K1, tag=tag))


def readV(L, par, db, kc, tag, slot=None):
    f = aF(16 + db * 2 + kc) if slot is None else slot
    L.append(ds_read(f, vKV, 32 * K1 + (par ^ 1) * 16 * K1 + (db * 2 + kc) * K1, tag=tag))
    return f


def tail(L, par):
    for qb in range(4):
        for kc in range(2):
            L.append(mfma(aL(qb), vOnes, vP(par, qb, kc), aL(qb)))
    for qb in range(4):
        for kc in range(2):
            L.append(mfma(aO(7, qb), aF(16 + 14 + kc), vP(par, qb, kc), aO(7, qb)))


def softmax_blocks(L, par, kvbs, diag=False):
    for kvb in kvbs:
        for qb in range(4):
            s = vS(par, kvb, qb)
            p = vP(par, qb, kvb >> 1)
            o = 2 * (kvb & 1)
            for r in range(4):
                L.append(valu('v_exp_f32', s[r], s[r]))
                if r & 1:
                    L.append(valu('v_cvt_pk_bf16_f32', p[o + (r >> 1)], s[r - 1], s[r]))


def xphase(L, par, mode, tag, skip_first_reads=False):
    for kvb in range(4):
        if not (skip_first_reads and kvb == 0):
            for dc in range(4):
                readK(L, par, kvb, dc, tag)
        for qb in range(4):
            s = vS(par, kvb, qb)
            if mode == 'd' and kvb > qb:
                for r in range(4):
                    L.append(valu('v_mov_b32', s[r], hex(NEGBIG)))
                continue
            if mode == 'd' and kvb == qb:
                for r in range(4):
                    L.append(cndmask(s[r], vNegBig, vNM(qb)[r], sMask[r], tag='ci'))
            for dc in range(4):
                c = s if dc else (0 if mode == 'z' else (s if (mode == 'd' and kvb == qb) else vNM(qb)))
                L.append(mfma(s, aF(kvb * 4 + dc), aQ(qb, dc), c))


vNegBig = V(5)


def yhead(L, par, tag):
    for db in range(8):
        fr = [readV(L, par, db, kc, tag) for kc in range(2)]
        if db == 7:
            break
        for qb in range(4):
            for kc in range(2):
                L.append(mfma(aO(db, qb), fr[kc], vP(par ^ 1, qb, kc), aO(db, qb)))


def yfull(L, par, tag, diag=False):
    n = 0
    for kc in range(2):
        qbs = (2, 3) if (diag and kc == 1) else range(4)
        for qb in qbs:
            L.append(mfma(aL(qb), vOnes, vP(par ^ 1, qb, kc), aL(qb)))
        for db in range(8):
            f = readV(L, par, db, kc, tag, slot=aF((0, 1, 2, 3, 4, 5, 8, 9, 10, 11, 6, 7)[n % 12]))
            n += 1
            for qb in qbs:
                L.append(mfma(aO(db, qb), f, vP(par ^ 1, qb, kc), aO(db, qb)))


def head(L):
    L += [wait(vm=0, lg=0, fence=True), barrier()]


def tg(stream, par):
    return (f'K{stream}{par}', None), (f'V{stream}{par ^ 1}', None)


def body_normal(par, mode, with_dma, name):
    L = [label(name)]
    head(L)
    tk, tv = tg('x', par)
    for dc in range(4):
        readK(L, par, 0, dc, tk)
    tail(L, par)
    if with_dma:
        att_dma(L, par, tags=((f'Vx{par}', None), (f'Kx{par ^ 1}', None)))
    softmax_blocks(L, par ^ 1, (2, 3))
    xphase(L, par, mode, tk, skip_first_reads=True)
    softmax_blocks(L, par, (0, 1))
    yhead(L, par, tv)
    L.append(salu('s_add_u32', sJ, sJ, 1))
    return schedule(L, verbose=name)


def zero_state(L, par_next):
    z = vP(par_next, 0, 0)
    for qb in range(4):
        for kc in range(2):
            for r in range(4):
                L.append(valu('v_mov_b32', vP(par_next, qb, kc)[r], 0))
    for n in range(9):
        L.append(mfma32(A(16 * n, 16), z, z, 0))
    for kc in range(2):
        for r in range(4):
            L.append(valu('v_accvgpr_write_b32', aF(30 + kc)[r], 0))


def rowmax(L, par, dst):
    for qb in range(4):
        vals = [vS(par, kvb, qb)[r] for kvb in range(4) for r in range(4)]
        m = dst[qb]
        L.append(valu('v_max3_f32', m, vals[0], vals[1], vals[2]))
        for n in range(3, 15, 2):
            L.append(valu('v_max3_f32', m, m, vals[n], vals[n + 1]))
        L.append(valu('v_max_f32', m, m, vals[15]))
    for op in ('v_permlane16_swap_b32', 'v_permlane32_swap_b32'):
        for qb in range(4):
            L.append(valu('v_mov_b32', vTmp[8 + qb], dst[qb]))
        for qb in range(4):
            L.append(permswap(op, dst[qb], vTmp[8 + qb]))
        for qb in range(4):
            L.append(valu('v_max_f32', dst[qb], dst[qb], vTmp[8 + qb]))


def mask_diag(L, par):
    for kvb in range(4):
        for qb in range(4):
            s = vS(par, kvb, qb)
            for r in range(4):
                if kvb > qb:
                    L.append(valu('v_mov_b32', s[r], hex(NEGBIG)))
                elif kvb == qb:
                    L.append(cndmask(s[r], vNegBig, s[r], sMask[r]))


def body_first():
    pre = []
    t0, t1 = vTmp[0], vTmp[1]
    pre += [valu('v_and_b32', t0, 15, vTid), valu('v_bfe_u32', t1, vTid, 4, 2), valu('v_lshlrev_b32', t1, 2, t1)]
    for r in range(4):
        pre += [vcmp('v_cmp_le_u32', sMask[r], t1, t0), valu('v_add_u32', t1, 1, t1)]
    pre += [valu('v_mov_b32', vNegBig, hex(NEGBIG)), valu('v_mov_b32', vKV, vL16),
            valu('v_and_b32', t0, 63, vTid), valu('v_mov_b32', t1, hex(OOB)), vcmp('v_cmp_eq_u32', 'vcc', 0, t0)]
    pre.append(raw(f'v_cndmask_b32_e64 {vSigW}, {t1}, 0, vcc', 'valu', rd=t1.regs() + ['vcc'], wr=vSigW.regs()))
    for r in range(4):
        pre.append(valu('v_mov_b32', vOnes[r], '0x3f803f80'))
    pre += [salu('s_and_b32', sT0, sW, 1), salu('s_lshl_b32', sT0, sT0, 13), salu('s_add_u32', sVsrc, sHB, sT0),
            salu('s_add_u32', sKsrc, sVsrc, hex(32 * K1)), salu('s_add_u32', sVsrc, sVsrc, hex(16 * K1)),
            salu('s_lshr_b32', sT1, sW, 1), salu('s_lshl_b32', sT1, sT1, 16), salu('s_add_u32', sLd, sT0, sT1),
            salu('s_mov_b32', sJ, 0),
            salu('s_mul_i32', sCtx, sRT2, 182 * 4096), salu('s_lshl_b32', sT1, sH, 14),
            salu('s_add_u32', sCtx, sCtx, sT1), salu('s_add_u32', sCtx, sCtx, hex(CH))]
    pre += [wait(vm=8, lg=0, fence=True), barrier()]
    stamp(pre, 3)
    pre += [scmp('s_cmp_lt_u32', sW, 2), branch('s_cbranch_scc0', 'L_first_g1')]
    pre = linear(pre)
    out = {}
    for role in ('g0', 'g1'):
        L = [label(f'L_first_{role}')]
        if role == 'g0':
            att_dma(L, 0, tags=(('Vx0', None), ('Kx1', None)))
        xphase(L, 0, 'z', ('K00', 't0'))
        zero_state(L, 1)
        L1 = schedule(L, verbose='first_' + role)
        L = []
        if role == 'g1':
            L += [salu('s_lshl_b32', sT0, sP, 2), salu('s_add_u32', sT0, sT0, sW), scmp('s_cmp_eq_u32', sT0, 2),
                  branch('s_cbranch_scc0', 'L_first_nomask'), nop(7)]
            M = []
            mask_diag(M, 0)
            L2 = linear(L)
            L3 = linear(M)
            L = [label('L_first_nomask')]
        L.insert(len(L), nop(7))
        m = vTmp[4:8]
        rowmax(L, 0, m)
        for qb in range(4):
            for r in range(4):
                L.append(valu('v_sub_f32', vNM(qb)[r], 0, m[qb]))
        if role == 'g0':
            L += [salu('s_lshl_b32', sT0, sW, 10), salu('s_add_u32', sT0, sT0, hex(MX)),
                  valu('v_add_u32', vTmp[0], sT0, vL16), ds_write(vTmp[0], m)]
        for kvb in range(4):
            for qb in range(4):
                for r in range(4):
                    L.append(valu('v_sub_f32', vS(0, kvb, qb)[r], vS(0, kvb, qb)[r], m[qb]))
        softmax_blocks(L, 0, (0, 1))
        L.append(salu('s_mov_b32', sJ, 1))
        L4 = linear(L)
        if role == 'g0':
            out['g0'] = (L1 + L4,)
        else:
            out['g1'] = (L1, L2, L3, L4)
    return pre, out


def normalise_store(L, qbs, tbase, srcs=None, rinv=None):
    st = []
    for qb in qbs:
        ri = V(tbase + 16 + qb % 4)
        if rinv is None:
            L += [valu('v_accvgpr_read_b32', ri, aL(qb)[0]), valu('v_rcp_f32', ri, ri)]
        for dc in range(4):
            t = V(tbase + 8 * (dc & 1), 8)
            for x in range(2):
                for r in range(4):
                    L.append(valu('v_accvgpr_read_b32', t[4 * x + r], aO(2 * dc + x, qb)[r]))
            for r in range(8):
                L.append(valu('v_mul_f32', t[r], t[r], ri))
            d = pack2(L, t[0:4], t[4:8])
            s = rot()
            L.append(salu('s_add_u32', s, sCtx, hex(dc * 4096)))
            st.append(vstore(d, vL16, sWS, s, off=qb * K1, flags='sc1'))
            L.append(st[-1])
    return st


def check_l(L, name, lvals):
    t = vTmp[0]
    if len(lvals) == 4:
        L += [valu('v_max3_f32', t, lvals[0], lvals[1], lvals[2]), valu('v_max_f32', t, t, lvals[3])]
    else:
        L += [valu('v_max_f32', t, lvals[0], lvals[1])]
    L += [valu('v_add_f32', vTmp[1], lvals[0], lvals[1])]
    if len(lvals) == 4:
        L += [valu('v_add_f32', vTmp[1], vTmp[1], lvals[2]), valu('v_add_f32', vTmp[1], vTmp[1], lvals[3])]
    thr = hex(LTHR) if not OPT['force_fb'] else '0'
    L += [valu('v_mov_b32', vTmp[2], thr), vcmp('v_cmp_nlt_f32', 'vcc', vTmp[1], vTmp[2]),
          branch('s_cbranch_vccz', f'L_ok_{name}')]


def fallback_call(name, ret_id):
    return linear([salu('s_mov_b32', sRole, ret_id), branch('s_branch', 'L_fallback'), label(f'L_ret_{ret_id}')])


def gen_fallback(nret):
    L = [label('L_fallback')]
    fr = [V(80 + 4 * n, 4) for n in range(16)]
    m, mn, al = vTmp[12:16], vTmp[4:8], vTmp[16:20]
    sT, sSrc = sB[8], sB[9]
    L.append(wait(vm=0, lg=0))
    for n in range(144):
        L.append(valu('v_accvgpr_write_b32', A(n), 0, tag='ci'))
    for qb in range(4):
        L.append(valu('v_mov_b32', m[qb], hex(NEGBIG)))
    L += [salu('s_mov_b32', sT, 0), salu('s_mov_b32', sSrc, sHB), label('L_fb_loop')]
    for g in range(4):
        L.append(salu('s_add_u32', sT1, sSrc, hex(g * 4 * K1)))
        for q in range(4):
            L.append(vload(fr[4 * g + q], vL16, sWS, sT1, off=q * K1, flags='sc1'))
    L.append(wait(vm=0))
    for kvb in range(4):
        for qb in range(4):
            for dc in range(4):
                L.append(mfma(vS(0, kvb, qb), fr[kvb * 4 + dc], aQ(qb, dc), vS(0, kvb, qb) if dc else 0))
    for g in range(4):
        L.append(salu('s_add_u32', sT1, sSrc, hex(16 * K1 + g * 4 * K1)))
        for q in range(4):
            L.append(vload(fr[4 * g + q], vL16, sWS, sT1, off=q * K1, flags='sc1'))
    L += [nop(7), salu('s_add_u32', sT, sT, 1), scmp('s_cmp_eq_u32', sT, sNt), branch('s_cbranch_scc0', 'L_fb_nomask')]
    P1 = linear(L)
    M = []
    mask_diag(M, 0)
    P2 = linear(M)
    L = [label('L_fb_nomask')]
    rowmax(L, 0, mn)
    for qb in range(4):
        L += [valu('v_max_f32', mn[qb], mn[qb], m[qb]), valu('v_sub_f32', al[qb], m[qb], mn[qb]),
              valu('v_exp_f32', al[qb], al[qb]), valu('v_mov_b32', m[qb], mn[qb])]
    t = vTmp[0]
    for qb in range(4):
        regs = [aO(db, qb)[r] for db in range(8) for r in range(4)] + [aL(qb)[r] for r in range(4)]
        for a in regs:
            L += [valu('v_accvgpr_read_b32', t, a), valu('v_mul_f32', t, t, al[qb]), valu('v_accvgpr_write_b32', a, t, tag='ci')]
    for kvb in range(4):
        for qb in range(4):
            for r in range(4):
                L.append(valu('v_sub_f32', vS(0, kvb, qb)[r], vS(0, kvb, qb)[r], m[qb]))
    softmax_blocks(L, 0, range(4))
    L.append(wait(vm=0))
    for qb in range(4):
        for kc in range(2):
            L.append(mfma(aL(qb), vOnes, vP(0, qb, kc), aL(qb)))
    for db in range(8):
        for qb in range(4):
            for kc in range(2):
                L.append(mfma(aO(db, qb), fr[db * 2 + kc], vP(0, qb, kc), aO(db, qb)))
    L += [nop(7), salu('s_add_u32', sSrc, sSrc, hex(32 * K1)), scmp('s_cmp_lt_u32', sT, sNt),
          branch('s_cbranch_scc1', 'L_fb_loop')]
    for r in range(nret):
        L += [scmp('s_cmp_eq_u32', sRole, r), branch('s_cbranch_scc1', f'L_ret_{r}')]
    L.append(raw('s_endpgm', 'br', bb=True))
    return P1, P2, linear(L)


def body_t1(role):
    par = 1 if role == 'A' else 0
    name = f'L_t1_{role}'
    L = [label(name)]
    head(L)
    tk, tv = tg('x', par)
    if role == 'A':
        L += [salu('s_lshl_b32', sT0, sP, 16), salu('s_sub_u32', sKsrc, sHB, sT0),
              salu('s_add_u32', sKsrc, sKsrc, hex(31 * 32 * K1))]
        att_dma(L, par, which='K', both=True, tags=(None, (f'Ky{par ^ 1}', None)))
    else:
        set_stream1(L)
        att_dma(L, par, tags=((f'Vy{par}', None), (f'Ky{par ^ 1}', None)))
        fix_stream1(L)
    tail(L, par)
    softmax_blocks(L, par ^ 1, (2, 3))
    yfull(L, par, tv, diag=True)
    L1 = schedule(L, verbose=name)
    L = [nop(6)]
    lv = [vTmp[4 + qb] for qb in range(4)]
    for qb in range(4):
        L.append(valu('v_accvgpr_read_b32', lv[qb], aL(qb)[0]))
    L += [salu('s_lshl_b32', sNt, sP, 1), salu('s_add_u32', sNt, sNt, 1 if role == 'A' else 2)]
    check_l(L, f't1{role}', lv)
    L2 = linear(L)
    L3 = fallback_call(role, 0 if role == 'A' else 1)
    L = [label(f'L_ok_t1{role}')]
    src = 1 if role == 'A' else 0
    L.append(valu('v_add_u32', vTmp[20], hex(QX + src * 16 * K1), vL16))
    L.append(valu('v_add_u32', vTmp[21], hex(MX + src * K1), vL16))
    normalise_store(L, (0, 1), 16 + 64 * par)
    L.append(ds_read(vTmp[12:16], vTmp[21], 0))
    for qb in range(4):
        for dc in range(4):
            L.append(ds_read(aQ(qb, dc), vTmp[20], (qb * 4 + dc) * K1))
    for qb in range(4):
        for r in range(4):
            L.append(valu('v_sub_f32', vNM(qb)[r], 0, vTmp[12 + qb]))
    L += [valu('v_add_u32', vKV, hex(64 * K1), vL16), salu('s_add_u32', sJ, sJ, 1)]
    L4 = linear(L)
    return L1, L2, L3, L4


def set_stream1(L):
    L += [salu('s_and_b32', sT1, sW, 1), salu('s_lshl_b32', sT1, sT1, 13), salu('s_add_u32', sT1, sT1, sHB),
          salu('s_lshl_b32', sT0, sP, 16), salu('s_sub_u32', sVsrc, sT1, sT0),
          salu('s_add_u32', sVsrc, sVsrc, hex(31 * 32 * K1 + 16 * K1)),
          salu('s_add_u32', sKsrc, sT1, hex(17 * 32 * K1))]


def fix_stream1(L):
    L += [salu('s_sub_u32', sVsrc, sKsrc, hex(16 * K1))]


def after_t2(L, role):
    src = 1 if role == 'A' else 0
    L += [salu('s_sub_u32', sT0, 15, sP), salu('s_lshl_b32', sT0, sT0, 1), salu('s_add_u32', sT0, sT0, src),
          salu('s_mul_i32', sCtx, sT0, 182 * 4096), salu('s_lshl_b32', sT1, sH, 14),
          salu('s_add_u32', sCtx, sCtx, sT1), salu('s_add_u32', sCtx, sCtx, hex(CH)), salu('s_add_u32', sJ, sJ, 1)]


def body_t2(role, with_x=True):
    par = 0 if role == 'A' else 1
    name = f'L_t2_{role}' + ('' if with_x else '_nox')
    L = [label(name)]
    head(L)
    tk = (f'Ky{par}', None)
    if role == 'A':
        L += [salu('s_mov_b32', sT1, hex(CNT + 32 * 256)), atomic_add(vOne, vSigW, sWS, sT1)]
        set_stream1(L)
        att_dma(L, par, tags=((f'Vy{par}', None), (f'Ky{par ^ 1}', None)))
        fix_stream1(L)
    elif with_x:
        att_dma(L, par, tags=((f'Vy{par}', None), (f'Ky{par ^ 1}', None)))
    normalise_store(L, (2, 3), 16 + 64 * (par ^ 1))
    if with_x:
        xphase(L, par, 'd' if role == 'A' else 'n', tk)
    zero_state(L, par ^ 1)
    if with_x:
        softmax_blocks(L, par, (0, 1))
    after_t2(L, role)
    return schedule(L, verbose=name)


def body_fin():
    par = 1
    L = [label('L_fin')]
    head(L)
    tk, tv = tg('x', par)
    tail(L, par)
    softmax_blocks(L, par ^ 1, (2, 3))
    yfull(L, par, tv)
    return schedule(L, verbose='fin')


def gen_merge():
    out = {}
    pre = [label('L_merge'), wait(lg=0, fence=True), barrier()]
    stamp(pre, 4)
    pre += [salu('s_mul_i32', sT0, sW, 18 * K1), valu('v_add_u32', vTmp[20], sT0, vL16),
            salu('s_sub_u32', sT0, 3, sW), salu('s_mul_i32', sT0, sT0, 18 * K1), valu('v_add_u32', vTmp[21], sT0, vL16),
            salu('s_lshl_b32', sNt, sP, 1), salu('s_sub_u32', sNt, 31, sNt), salu('s_add_u32', sT0, sW, 1),
            salu('s_lshr_b32', sT0, sT0, 1), salu('s_and_b32', sT0, sT0, 1), salu('s_add_u32', sNt, sNt, sT0),
            scmp('s_cmp_lt_u32', sW, 2), branch('s_cbranch_scc0', 'L_merge_hi')]
    pre = linear(pre)
    for role, mine, other, rid in (('lo', (0, 1), (2, 3), 2), ('hi', (2, 3), (0, 1), 3)):
        L = [label(f'L_merge_{role}'), nop(4)]
        for x, qb in enumerate(other):
            for db in range(8):
                L.append(ds_write(vTmp[20], aO(db, qb), (x * 9 + db) * K1))
            L.append(ds_write(vTmp[20], aL(qb), (x * 9 + 8) * K1))
        L += [wait(lg=0, fence=True), barrier()]
        part = [V(16 + 4 * n, 4) for n in range(18)]
        for x in range(2):
            L.append(ds_read(part[x * 9 + 8], vTmp[21], (x * 9 + 8) * K1))
        for x in range(2):
            for db in range(8):
                L.append(ds_read(part[x * 9 + db], vTmp[21], (x * 9 + db) * K1))
        lv = [vTmp[4], vTmp[5]]
        for x, qb in enumerate(mine):
            L += [valu('v_accvgpr_read_b32', lv[x], aL(qb)[0]), valu('v_add_f32', lv[x], lv[x], part[x * 9 + 8][0])]
        check_l(L, f'm{role}', lv)
        L1 = linear(L)
        F = [wait(lg=0), salu('s_mov_b32', sRole, rid), branch('s_branch', 'L_fallback'), label(f'L_ret_{rid}')]
        normalise_store(F, mine, 96)
        F.append(branch('s_branch', 'L_k3'))
        L2 = linear(F)
        L = [label(f'L_ok_m{role}'), wait(lg=0)]
        for x, qb in enumerate(mine):
            L.append(valu('v_rcp_f32', lv[x], lv[x]))
        for x, qb in enumerate(mine):
            for dc in range(4):
                t = V(96 + 8 * (dc & 1), 8)
                for y in range(2):
                    for r in range(4):
                        L.append(valu('v_accvgpr_read_b32', t[4 * y + r], aO(2 * dc + y, qb)[r]))
                for y in range(2):
                    for r in range(4):
                        L.append(valu('v_add_f32', t[4 * y + r], t[4 * y + r], part[x * 9 + 2 * dc + y][r]))
                for r in range(8):
                    L.append(valu('v_mul_f32', t[r], t[r], lv[x]))
                d = pack2(L, t[0:4], t[4:8])
                s = rot()
                L += [salu('s_add_u32', s, sCtx, hex(dc * 4096)), vstore(d, vL16, sWS, s, off=qb * K1, flags='sc1')]
        if role == 'lo':
            L.append(branch('s_branch', 'L_k3'))
        L3 = linear(L)
        out[role] = (L1, L2, L3)
    return pre, out


def gen_k3():
    L = [label('L_k3')]
    stamp(L, 5)
    D = 6
    acc = lambda nb, qb: V(16 + (nb * 4 + qb) * 4, 4)
    buf = lambda n, f: A(36 * (n % D) + 4 * f, 4)
    sRT, sCT, sA, sBw, sDp = sB[0], sB[1], sB[2], sB[3], sB[4]
    vHi, vXo = V(6), V(7)
    xres = [V(96 + 2 * nb, 2) for nb in range(5)]
    L += [salu('s_and_b32', sT0, sWG, 7), salu('s_lshr_b32', sT1, sWG, 3),
          salu('s_lshr_b32', sRT, sT0, 1), salu('s_lshl_b32', sRT, sRT, 3), salu('s_lshr_b32', sCT, sT1, 2),
          salu('s_add_u32', sRT, sRT, sCT),
          salu('s_and_b32', sCT, sT0, 1), salu('s_lshl_b32', sCT, sCT, 2), salu('s_and_b32', sT1, sT1, 3),
          salu('s_add_u32', sCT, sCT, sT1),
          salu('s_mul_i32', sA, sRT, 182), salu('s_add_u32', sA, sA, sW), salu('s_lshl_b32', sA, sA, 12),
          salu('s_add_u32', sA, sA, hex(CH)),
          salu('s_mul_i32', sBw, sCT, 182), salu('s_add_u32', sBw, sBw, sW), salu('s_mul_i32', sBw, sBw, 5 * K1),
          salu('s_add_u32', sBw, sBw, hex(WP)),
          salu('s_lshr_b32', sT0, sRT, 1), salu('s_sub_u32', sT1, 15, sT0), salu('s_min_u32', sDp, sT0, sT1),
          salu('s_lshl_b32', sDp, sDp, 8), salu('s_add_u32', sDp, sDp, hex(CNT + 33 * 256)),
          valu('v_add_u32', vHi, 4096, vL16)]
    L += [valu('v_and_b32', V(8), 15, vTid), salu('s_lshl_b32', sT0, sRT, 2), salu('s_add_u32', sT0, sT0, sW),
          salu('s_lshl_b32', sT0, sT0, 4), valu('v_add_u32', V(8), sT0, V(8)), valu('v_mul_u32_u24', vXo, 1280, V(8)),
          valu('v_bfe_u32', V(8), vTid, 4, 2), valu('v_lshl_add_u32', vXo, V(8), 3, vXo),
          salu('s_mul_i32', sT0, sCT, 160), valu('v_add_u32', vXo, sT0, vXo)]
    L += [wait(vm=0), salu('s_lshl_b32', sT1, sP, 8), salu('s_add_u32', sT1, sT1, hex(CNT + 33 * 256)),
          atomic_add(vOne, vSigW, sWS, sT1), salu('s_mov_b32', sT1, hex(CNT + 32 * 256))]
    for i in L:
        i.bb = True
    poll(L, 'C', sWS, sT1, 256, V(110), V(111))
    kcs = [128 + 4 * n for n in range(14)] + [4 * n for n in range(32)]
    ld = {}

    def loads(n, g0=None):
        kc = kcs[n]
        ta, tb = rot(), rot()
        L.append(salu('s_add_u32', ta, sA, hex(kc * 4096)))
        L.append(salu('s_add_u32', tb, sBw, hex(kc * 5 * K1)))
        if n == 13:
            L.append(glue([scmp('s_cmp_lt_u32', sW, 2), salu('s_cselect_b32', ta, ta, hex(OOB)),
                           salu('s_cselect_b32', tb, tb, hex(OOB))]))
        o = []
        for f in range(5):
            o.append(vload(buf(n, f), vL16 if f < 4 else vHi, sWS, tb, off=(f & 3) * K1, flags='sc1'))
        for f in range(4):
            o.append(vload(buf(n, 5 + f), vL16, sWS, ta, off=f * K1, flags='sc1'))
        for k, x in enumerate(o):
            if g0 is not None:
                x.dl = g0 + 2 * k
                x.rel = g0 + 2 * k
            L.append(x)
        ld[n] = o
    for n in range(D - 1):
        loads(n)
    xl = [vload(xres[nb], vXo, sX, 0, off=32 * nb) for nb in range(5)]
    L += xl
    for n in range(46):
        L.append(wait_for(L, ld[n]))
        if n + D - 1 == 14:
            poll(L, 'D', sWS, sDp, 128, V(110), V(111))
        first = True
        for nb in range(5):
            for qb in range(4):
                L.append(mfma(acc(nb, qb), buf(n, nb), buf(n, 5 + qb), acc(nb, qb) if n else 0))
                if first and n + D - 1 < 46:
                    loads(n + D - 1, 20 * n)
                first = False
    L1 = schedule(L, verbose='k3')
    L = [barrier()]
    stamp(L, 6, V(110))
    L += [salu('s_mul_i32', sT0, sW, 20 * K1), valu('v_add_u32', V(8), sT0, vL16),
          salu('s_mul_i32', sT0, sW, 5 * K1), valu('v_add_u32', V(9), sT0, vL16),
          valu('v_add_u32', V(12), hex(40 * K1), V(9)), nop(4)]
    for nb in range(5):
        for qb in range(4):
            L.append(ds_write(V(8), acc(nb, qb), (qb * 5 + nb) * K1))
    L += [wait(lg=0), barrier()]
    part = lambda w, nb: V(112 + (w * 5 + nb) * 4, 4)
    for nb in range(5):
        for w in range(4):
            L.append(ds_read(part(w, nb), V(9) if w < 2 else V(12), ((w & 1) * 20 + nb) * K1))
    for nb in range(5):
        p0 = part(0, nb)
        for r in range(4):
            L += [valu('v_add_f32', p0[r], p0[r], part(1, nb)[r]),
                  valu('v_add_f32', part(2, nb)[r], part(2, nb)[r], part(3, nb)[r])]
        for d in range(2):
            L += [valu('v_lshlrev_b32', V(10), 16, xres[nb][d]), valu('v_and_b32', V(11), '0xffff0000', xres[nb][d]),
                  valu('v_add_f32', p0[2 * d], p0[2 * d], V(10)), valu('v_add_f32', p0[2 * d + 1], p0[2 * d + 1], V(11))]
        for r in range(4):
            L.append(valu('v_add_f32', p0[r], p0[r], part(2, nb)[r]))
        L += [valu('v_cvt_pk_bf16_f32', p0[0], p0[0], p0[1]), valu('v_cvt_pk_bf16_f32', p0[1], p0[2], p0[3]),
              vstore(p0[0:2], vXo, sOUT, 0, off=32 * nb)]
    stamp(L, 7, V(110))
    return L1 + linear(L)


def build():
    init = gen_init()
    proj = gen_proj()
    pre0, first = body_first()
    OD, ED = body_normal(1, 'n', True, 'L_od'), body_normal(0, 'n', True, 'L_ed')
    ON, EN = body_normal(1, 'n', False, 'L_on'), body_normal(0, 'n', False, 'L_en')
    EdN, OdN = body_normal(0, 'd', False, 'L_edn'), body_normal(1, 'd', False, 'L_odn')
    EdD = body_normal(0, 'd', True, 'L_edd')
    TA1, TB1 = body_t1('A'), body_t1('B')
    TA2, TB2, TB2n = body_t2('A'), body_t2('B'), body_t2('B', False)
    FIN = body_fin()
    mpre, mrg = gen_merge()
    K3 = gen_k3()
    FB = gen_fallback(4)

    def br(op, t): return [branch(op, t)]
    g_after_first_g0 = linear(br('s_branch', 'L_od'))
    g_after_first_g1 = linear([scmp('s_cmp_lg_u32', sP, 0), branch('s_cbranch_scc1', 'L_on'),
                               scmp('s_cmp_eq_u32', sW, 2), branch('s_cbranch_scc1', 'L_t1_A'),
                               branch('s_branch', 'L_odn')])
    g_on = linear([salu('s_lshl_b32', sT0, sP, 1), scmp('s_cmp_lg_u32', sJ, sT0), branch('s_cbranch_scc1', 'L_en'),
                   scmp('s_cmp_eq_u32', sW, 2), branch('s_cbranch_scc1', 'L_edn')])
    g_en = linear([salu('s_lshl_b32', sT0, sP, 1), salu('s_add_u32', sT0, sT0, 1), scmp('s_cmp_lg_u32', sJ, sT0),
                   branch('s_cbranch_scc1', 'L_on')])
    g_od = linear([scmp('s_cmp_lg_u32', sJ, 16), branch('s_cbranch_scc1', 'L_ed'),
                   scmp('s_cmp_eq_u32', sW, 3), branch('s_cbranch_scc1', 'L_edd'),
                   salu('s_lshl_b32', sT0, sP, 2), salu('s_add_u32', sT0, sT0, sW), scmp('s_cmp_eq_u32', sT0, 28),
                   branch('s_cbranch_scc1', 'L_edd')])
    g_ed = linear([scmp('s_cmp_lg_u32', sJ, 17), branch('s_cbranch_scc1', 'L_od'), branch('s_branch', 'L_fin')])
    g_ta2 = linear([scmp('s_cmp_lg_u32', sJ, 17), branch('s_cbranch_scc1', 'L_od'), branch('s_branch', 'L_fin')])
    g_tb1 = linear([scmp('s_cmp_eq_u32', sJ, 17), branch('s_cbranch_scc1', 'L_t2_B_nox')])
    g_tb2 = linear([scmp('s_cmp_lg_u32', sJ, 16), branch('s_cbranch_scc1', 'L_ed'), branch('s_branch', 'L_edd')])
    g_tb2n = linear(br('s_branch', 'L_merge'))
    end = [label('L_end'), raw('s_endpgm', 'br')]
    endp = [raw('s_endpgm', 'br')]

    stop = OPT['stop']
    if stop == 'proj':
        prog = init + proj + linear([wait(vm=0)]) + end
        return prog, [('all', prog)]
    prog = (init + proj + pre0 + first['g0'][0] + g_after_first_g0 +
            sum(first['g1'], []) + g_after_first_g1 +
            ON + g_on + EN + g_en + OdN + sum(TB1, []) + g_tb1 + TB2 + g_tb2 +
            TB2n + g_tb2n +
            EdN + sum(TA1, []) + TA2 + g_ta2 +
            OD + g_od + ED + g_ed +
            EdD + FIN + mpre + sum(mrg['lo'], []) + sum(mrg['hi'], []) + K3 + endp +
            sum(FB, []) + end)
    paths = []
    fbp = FB[0] + FB[2] + FB[0][148:] + FB[1] + FB[2]
    for p in range(8):
        for w in range(4):
            for fb in (False, True):
                P = init + proj + pre0
                if w < 2:
                    P = P + first['g0'][0] + g_after_first_g0
                    for j in range(1, 17):
                        if j & 1:
                            P = P + OD + g_od
                        else:
                            P = P + (EdD if (j == 16 and p == 7 and w == 0) else ED + g_ed)
                    P = P + FIN
                else:
                    f = first['g1']
                    P = P + f[0] + f[1] + (f[2] if (p == 0 and w == 2) else []) + f[3] + g_after_first_g1
                    last = 2 * p if w == 2 else 2 * p + 1
                    for j in range(1, last + 1):
                        if j == last:
                            P = P + (EdN if w == 2 else OdN)
                        else:
                            P = P + (ON + g_on if j & 1 else EN + g_en)
                    T = TA1 if w == 2 else TB1
                    P = P + T[0] + T[1] + ((T[2] + fbp) if fb else []) + T[3]
                    j = last + 2
                    if w == 2:
                        P = P + TA2 + g_ta2
                    elif j == 17:
                        P = P + g_tb1 + TB2n + g_tb2n
                    else:
                        P = P + g_tb1 + TB2 + g_tb2
                    for j in range(last + 3, 17):
                        if j & 1:
                            P = P + OD + g_od
                        else:
                            P = P + (EdD if (j == 16 and w == 3) else ED + g_ed)
                    if not (w == 3 and p == 7):
                        P = P + FIN
                m = mrg['lo' if w < 2 else 'hi']
                P = P + mpre + m[0] + ((m[1][:3] + fbp + m[1][3:]) if fb else m[2]) + K3
                paths.append((f'p{p}w{w}fb{int(fb)}', P))
    return prog, paths


HEADER = open(os.path.join(os.path.dirname(os.path.abspath(__file__)), 'header.txt')).read()


def emit(path):
    prog, paths = build()
    nerr = 0
    seen = set()
    for name, P in paths:
        nb = sum(1 for i in P if i.k == 'bar')
        for e in check_path(P, name) + check_path(P, name, fast=False):
            key = e.split(': ', 1)[1]
            if key not in seen:
                seen.add(key)
                nerr += 1
                if nerr < 40:
                    print('CHECK', e)
        seen.add(('nb', nb))
    print('; barrier counts:', sorted(x[1] for x in seen if isinstance(x, tuple)), 'errors', nerr,
          'instrs', len(prog))
    k = NAME + '_kernel'
    s = HEADER + f'''; @launch grid=(256,1,1) block=(256,1,1) lds=163840
.amdgcn_target "amdgcn-amd-amdhsa--gfx950"
.text
.globl {k}
.p2align 8
.type {k},@function
{k}:
''' + text(prog) + f'''.section .rodata,"a"
.p2align 6
.amdhsa_kernel {k}
  .amdhsa_next_free_vgpr 512
  .amdhsa_next_free_sgpr 102
  .amdhsa_accum_offset 256
  .amdhsa_group_segment_fixed_size 0
  .amdhsa_kernarg_size 96
  .amdhsa_user_sgpr_count 2
  .amdhsa_user_sgpr_kernarg_segment_ptr 1
  .amdhsa_system_sgpr_workgroup_id_x 1
.end_amdhsa_kernel
'''
    open(path, 'w').write(s)
    return nerr


if __name__ == '__main__':
    out = sys.argv[1]
    for a in sys.argv[2:]:
        k, _, v = a.partition('=')
        OPT[k] = v if v else True
    sys.exit(1 if emit(out) else 0)
```

```python
import sys
import os
sys.path.insert(0, os.path.dirname(os.path.abspath(__file__)))
from core import *

NAME = 'parallel_sum__compressed_kv_cla__dense_activation_relu__prompt'
OPT = dict(stop=None, stamps=False, force_fb=False, kvstep=5, attstep=5, qhstep=5, touch=1, code=1)

XN = 0x0000000
KV = 0x0400000
CH = 0x2400000
WP = 0x3C00000
CNT = 0x4400000
TS = 0x4500000
WS_BYTES = 0x10000000
OOB = 0x40000000
K1 = 1024

sWG = S(2)
sX, sC, sWKV, sWQ, sW1, sWR, sWS, sOUT, sDBG = (S(4 + 4 * i, 4) for i in range(9))
sW, sH, sP = S(40), S(41), S(42)
sT0, sT1, sSpin = S(43), S(44), S(45)
sB = [S(46 + i) for i in range(10)]
sRot = [S(56 + i) for i in range(4)]
sMask = [S(60 + 2 * i, 2) for i in range(4)]
sArg = 68
sJ, sRole, sNt, sRT2, sStamp = S(92), S(93), S(94), S(95), S(96)
sTm = S(98, 2)
_rot = [0]


def rot():
    _rot[0] = (_rot[0] + 1) % len(sRot)
    return sRot[_rot[0]]


def ptr(i): return S(sArg + 2 * i), S(sArg + 2 * i + 1)


vTid, vL16, vC0, vC1, vW, vW1 = V(0), V(1), V(2), V(3), V(4), V(5)
vX = [V(6), V(7)]
vY = [V(8 + i) for i in range(4)]
vWR, vYR, vSig, vOne = V(12), V(13), V(14), V(15)
vKV, vSigW, vT = V(2), V(3), V(4)

KV_W, KV_C = 0, 64 * K1
QH_W = 16 * K1
QH_R = 128 * K1
QX = 128 * K1
MX = 64 * K1 + 48 * K1

SCALE = 0x3E029434
import struct
_c = struct.unpack('<I', struct.pack('<f', 1.4426950408889634 / 128 ** 0.5))[0]
SCALE = _c
NEGBIG = 0xF149F2CA
LTHR = 0x4E800000


def srd(L, d, p, nbytes):
    L += [salu('s_mov_b32', d[0], p[0]), salu('s_and_b32', d[1], p[1], '0xffff'),
          salu('s_mov_b32', d[2], hex(nbytes)), salu('s_mov_b32', d[3], '0x20000')]


def stamp(L, n=None, t=None, real=False):
    if not OPT['stamps']:
        return
    t = t or V(29)
    txt = '\n  '.join([f's_mem{"real" if real else ""}time {sTm}', 's_waitcnt lgkmcnt(0)', f'v_mov_b32 {t}, {sTm[0]}',
                       's_mov_b64 exec, 1', f'buffer_store_dword {t}, {vL16}, {sWS}, {sStamp} offen',
                       's_mov_b64 exec, -1', f's_add_u32 {sStamp}, {sStamp}, 4'])
    L.append(raw(txt, 'vst', rd=vL16.regs() + ['VM'], wr=t.regs() + ['VM'], bb=True))


def poll_issue(L, srdx, soff, t, z, **kw):
    L.append(valu('v_mov_b32', z, 0))
    L.append(vload(t, z, srdx, soff, flags='sc1', **kw))
    return L[-1]


def poll(L, name, srdx, soff, target, t, z, sampled=False):
    lab = label(f'L_poll_{name}')
    lab.rd, lab.wr = ['VM', 'LDSF'], ['VM']
    n0 = len(L)
    if sampled:
        L += [readfirst(sT0, t), scmp('s_cmp_ge_u32', sT0, target), branch('s_cbranch_scc1', f'L_pd_{name}')]
        L[n0].rd += ['VM', 'LDSF']
        L[n0].wr += ['VM']
    L += [valu('v_mov_b32', z, 0), salu('s_mov_b32', sSpin, hex(400000)), lab,
          vload(t, z, srdx, soff, flags='sc1'), wait(vm=0), readfirst(sT0, t),
          scmp('s_cmp_ge_u32', sT0, target), branch('s_cbranch_scc1', f'L_pd_{name}'),
          raw('s_sleep 2'), salu('s_sub_u32', sSpin, sSpin, 1), scmp('s_cmp_lg_u32', sSpin, 0),
          branch('s_cbranch_scc1', f'L_poll_{name}'), label(f'L_pd_{name}')]
    for i in L[n0:]:
        i.bb = True
    if sampled:
        for i in L[n0 + 3:-1]:
            i.tag = 'slow'


def piece(L, vaddr, srdx, sbase, goff, slds, loff, tag=None, flags='', dl=None, rel=None):
    t = rot()
    L.append(salu('s_add_u32', 'm0', slds, hex(loff), rel=None if rel is None else rel - 2))
    L.append(salu('s_add_u32', t, sbase, hex(goff), rel=None if rel is None else rel - 2))
    d = dma(vaddr, srdx, t, tag=tag, flags=flags, dl=dl, rel=rel)
    L.append(d)
    return d


def gen_init():
    L = []
    L += [scmp('s_cmp_ge_u32', sWG, 256), branch('s_cbranch_scc1', 'L_end')]
    L += [raw(f's_load_dwordx16 s[{sArg}:{sArg + 15}], s[0:1], 0', wr=R('s', sArg, 16)),
          raw(f's_load_dwordx8 s[{sArg + 16}:{sArg + 23}], s[0:1], 64', wr=R('s', sArg + 16, 8))]
    lane, t0, t1, t2, t3 = V(16), V(17), V(18), V(19), V(20)
    L += [valu('v_lshrrev_b32', t0, 6, vTid), valu('v_and_b32', lane, 63, vTid), readfirst(sW, t0),
          valu('v_lshlrev_b32', vL16, 4, lane)]
    L += [salu('s_and_b32', sT0, sWG, 7), salu('s_lshl_b32', sT0, sT0, 2), salu('s_lshr_b32', sT1, sWG, 3),
          salu('s_and_b32', sT1, sT1, 3), salu('s_add_u32', sH, sT0, sT1), salu('s_lshr_b32', sP, sWG, 5)]
    L += [valu('v_lshrrev_b32', t0, 3, lane), valu('v_and_b32', t1, 7, lane), valu('v_lshrrev_b32', t2, 4, lane),
          valu('v_xor_b32', t3, t1, t2), valu('v_lshlrev_b32', t3, 4, t3), valu('v_lshl_add_u32', vC0, t0, 10, t3),
          valu('v_xor_b32', vC1, 64, vC0)]
    L += [valu('v_lshlrev_b32', t2, 1, t2), valu('v_xor_b32', t3, t1, t2), valu('v_lshlrev_b32', t3, 4, t3),
          valu('v_and_b32', t1, 3, t0), valu('v_lshrrev_b32', t2, 2, t0), valu('v_lshl_add_u32', t1, t2, 3, t1),
          valu('v_lshl_add_u32', vW, t1, 13, t3),
          valu('v_mul_u32_u24', t1, 3456, t1), valu('v_add_u32', vW1, t1, t3),
          valu('v_mul_u32_u24', t1, 1280, t0), valu('v_add_u32', vWR, t1, t3)]
    wr_, wc_ = sB[8], sB[9]
    L += [salu('s_lshr_b32', wr_, sW, 1), salu('s_and_b32', wc_, sW, 1)]
    L += [valu('v_and_b32', t0, 15, lane), valu('v_lshrrev_b32', t1, 4, lane), valu('v_lshrrev_b32', t2, 1, t0),
          valu('v_xor_b32', t2, t1, t2), valu('v_lshlrev_b32', t2, 4, t2), valu('v_lshl_add_u32', t2, t0, 7, t2),
          salu('s_lshl_b32', sT0, wr_, 14), salu('s_add_u32', sT0, sT0, hex(KV_C)),
          valu('v_add_u32', vX[0], sT0, t2), valu('v_xor_b32', vX[1], 64, vX[0])]
    L += [valu('v_bfe_u32', t0, lane, 2, 3),
          valu('v_lshrrev_b32', t1, 5, lane),
          valu('v_and_b32', t2, 3, lane), valu('v_lshlrev_b32', t2, 3, t2),
          valu('v_lshl_add_u32', t2, t0, 7, t2), valu('v_lshl_add_u32', t2, t1, 11, t2),
          valu('v_lshrrev_b32', t0, 1, t0)]
    L += [salu('s_lshl_b32', sT0, wc_, 13)]
    for cb in range(4):
        L += [valu('v_xor_b32', t1, cb, t0), valu('v_lshl_add_u32', t1, t1, 5, t2), valu('v_add_u32', vY[cb], sT0, t1)]
    L += [valu('v_xor_b32', t1, sW, t0), valu('v_lshl_add_u32', t1, t1, 5, t2),
          valu('v_add_u32', vYR, hex(QH_R), t1)]
    L += [valu('v_mov_b32', vOne, 1), valu('v_mov_b32', t0, hex(OOB)), vcmp('v_cmp_eq_u32', 'vcc', 0, vTid),
          cndmask(vSig, t0, 0, 'vcc')]
    L[-1].t = f'v_cndmask_b32 {vSig}, {t0}, 0, vcc'.replace('v_cndmask_b32', 'v_cndmask_b32_e64')
    L += [wait(lg=0)]
    srd(L, sX, ptr(0), 2621440)
    srd(L, sC, ptr(1), 2097152)
    srd(L, sWQ, ptr(2), 5242880)
    srd(L, sW1, ptr(7), 2211840)
    srd(L, sOUT, ptr(9), 2621440)
    srd(L, sDBG, ptr(10), 256)
    srd(L, sWS, ptr(11), WS_BYTES)
    L += [scmp('s_cmp_lt_u32', sW, 2), salu('s_cselect_b32', sWKV[0], ptr(3)[0], ptr(4)[0]),
          salu('s_cselect_b32', sWKV[1], ptr(3)[1], ptr(4)[1]), salu('s_and_b32', sWKV[1], sWKV[1], '0xffff'),
          salu('s_mov_b32', sWKV[2], hex(4194304)), salu('s_mov_b32', sWKV[3], '0x20000')]
    L += [scmp('s_cmp_lt_u32', sWG, 128), salu('s_cselect_b32', sWR[0], ptr(5)[0], ptr(8)[0]),
          salu('s_cselect_b32', sWR[1], ptr(5)[1], ptr(8)[1]),
          salu('s_cselect_b32', sWR[2], hex(5242880), hex(2211840)),
          salu('s_and_b32', sWR[1], sWR[1], '0xffff'), salu('s_mov_b32', sWR[3], '0x20000')]
    L[-3].t = f's_mov_b32 {sWR[2]}, {hex(2211840)}'
    L.insert(len(L) - 2, raw(f's_cmov_b32 {sWR[2]}, {hex(5242880)}', rd=['scc'] + sWR[2].regs(), wr=sWR[2].regs()))
    if OPT['stamps']:
        L += [salu('s_lshl_b32', sStamp, sWG, 2), salu('s_add_u32', sStamp, sStamp, sW),
              salu('s_lshl_b32', sStamp, sStamp, 9), salu('s_add_u32', sStamp, sStamp, hex(TS))]
    stamp(L, real=True)
    stamp(L, 0)
    xa = V(21)
    row = V(22)
    L += [salu('s_lshl_b32', sT0, sWG, 3), salu('s_lshl_b32', sT1, sW, 1), salu('s_add_u32', sT0, sT0, sT1),
          valu('v_lshrrev_b32', row, 5, lane), valu('v_add_u32', row, sT0, row),
          valu('v_mul_u32_u24', xa, 1280, row), valu('v_and_b32', t0, 31, lane), valu('v_lshl_add_u32', xa, t0, 4, xa)]
    xr = [V(32 + 4 * n, 4) for n in range(3)]
    lnl = [vload(xr[n], xa, sX, 0, off=512 * n) for n in range(3)]
    L += lnl
    cB, wB, lC, lW, kvS = sB[0], sB[1], sB[2], sB[3], sB[4]
    L += [salu('s_lshl_b32', cB, sP, 18), salu('s_lshl_b32', sT0, sW, 16), salu('s_add_u32', cB, cB, sT0),
          salu('s_lshl_b32', wB, sH, 8), salu('s_lshl_b32', sT0, wc_, 7), salu('s_add_u32', wB, wB, sT0),
          salu('s_lshl_b32', lW, sW, 13), salu('s_add_u32', lC, lW, hex(KV_C)),
          salu('s_lshl_b32', kvS, sH, 20), salu('s_lshl_b32', sT0, sP, 17), salu('s_add_u32', kvS, kvS, sT0),
          salu('s_lshl_b32', sT0, wr_, 16), salu('s_add_u32', kvS, kvS, sT0), salu('s_add_u32', kvS, kvS, hex(KV))]
    kv_dma_c(L, 0)
    kv_dma_w(L, 0)
    kv_dma_w(L, 1)
    nfirst = len([i for i in L if i.k in VMEM])
    tW, tC, tQ, t1w = V(24), V(25), V(26), V(27)
    if int(OPT['touch']):
        L += [valu('v_lshrrev_b32', t0, 4, lane), salu('s_lshl_b32', sT0, wc_, 2), valu('v_add_u32', t0, sT0, t0),
              valu('v_lshlrev_b32', t0, 6, t0), valu('v_bfe_u32', t1, lane, 1, 3), valu('v_add_u32', t0, t0, t1),
              salu('s_lshl_b32', sT0, sP, 3), valu('v_add_u32', t0, sT0, t0), valu('v_lshlrev_b32', t0, 13, t0),
              valu('v_and_b32', t1, 1, lane), valu('v_lshl_add_u32', t0, t1, 7, t0), salu('s_lshl_b32', sT0, sH, 8),
              vload(A(240), t0, sWKV, sT0)]
        L += [salu('s_and_b32', sT0, sH, 3), salu('s_lshl_b32', sT0, sT0, 6), salu('s_lshl_b32', sT1, sP, 8),
              salu('s_add_u32', sT0, sT0, sT1), valu('v_add_u32', tC, sT0, lane), valu('v_lshlrev_b32', tC, 10, tC),
              salu('s_lshl_b32', sT0, sW, 7), valu('v_add_u32', tC, sT0, tC), vload(A(241), tC, sC, 0)]
        L += [salu('s_mul_i32', sT0, sP, 80), salu('s_mul_i32', sT1, sW, 20), salu('s_add_u32', sT0, sT0, sT1),
              valu('v_lshrrev_b32', t0, 1, lane), valu('v_add_u32', t0, sT0, t0), valu('v_lshlrev_b32', t0, 13, t0),
              valu('v_and_b32', t1, 1, lane), valu('v_lshl_add_u32', t0, t1, 7, t0), salu('s_lshl_b32', sT1, sH, 8),
              valu('v_add_u32', t0, sT1, t0), valu('v_mov_b32', t2, hex(OOB)),
              vcmp('v_cmp_gt_u32', 'vcc', 40, lane), cndmask(tQ, t2, t0, 'vcc'),
              valu('v_add_u32', t0, sT0, lane), valu('v_mul_u32_u24', t0, 3456, t0), salu('s_lshl_b32', sT1, sH, 7),
              valu('v_add_u32', t0, sT1, t0), vcmp('v_cmp_gt_u32', 'vcc', 20, lane), cndmask(t1w, t2, t0, 'vcc')]
    if int(OPT['code']):
        sCode = S(64, 4)
        L += [raw(f's_getpc_b64 {sCode[0:2]}', wr=sCode[0:2].regs()), label('L_pc'),
              salu('s_and_b32', sCode[1], sCode[1], '0xffff'), salu('s_mov_b32', sCode[2], 'L_end-L_pc'),
              salu('s_mov_b32', sCode[3], '0x20000'),
              salu('s_lshr_b32', sT0, sWG, 3), salu('s_lshl_b32', sT0, sT0, 2), salu('s_add_u32', sT0, sT0, sW),
              salu('s_lshl_b32', sT0, sT0, 13), valu('v_lshlrev_b32', t0, 7, lane), vload(A(242), t0, sCode, sT0)]

    def late(LL, s, g):
        if not int(OPT['touch']):
            return
        if s == 0:
            LL.append(vload(V(28), tC, sC, 0, off=512, rel=g, dl=g + 4))
        if s == 2:
            LL.append(vload(tQ, tQ, sWQ, 0, rel=g, dl=g + 4))
            LL.append(vload(t1w, t1w, sW1, 0, rel=g + 5, dl=g + 9))
    L += [valu('v_mov_b32', t0, 0), salu('s_lshl_b32', sT0, sWG, 8), salu('s_add_u32', sT0, sT0, hex(CNT)),
          scmp('s_cmp_lt_u32', sWG, 41), salu('s_cselect_b32', sT0, sT0, hex(OOB)),
          vstore(t0, vSig, sWS, sT0, flags='sc1')]
    L.append(wait_for(L, lnl))
    e = [V(48 + i) for i in range(24)]
    acc, tmp = V(44), V(45)
    half = [raw('s_mov_b32 exec_lo, 0xffff', wr=['exec']), raw('s_mov_b32 exec_hi, 0xffff', wr=['exec'])]
    full = [raw('s_mov_b64 exec, -1', wr=['exec'])]

    def cp(x): return [raw(i.t, wr=['exec']) for i in x]
    for n in range(3):
        for d in range(4):
            L += [valu('v_lshlrev_b32', e[8 * n + 2 * d], 16, xr[n][d]),
                  valu('v_and_b32', e[8 * n + 2 * d + 1], '0xffff0000', xr[n][d])]
    L.append(valu('v_add_f32', acc, e[0], e[1]))
    for i in range(2, 16):
        L.append(valu('v_add_f32', acc, acc, e[i]))
    L += cp(half)
    for i in range(16, 24):
        L.append(valu('v_add_f32', acc, acc, e[i]))
    L += cp(full)

    def reduce32(a):
        for x in (1, 2, 4, 8, 16):
            L.append(swizzle(tmp, a, (x << 10) | 0x1f))
            L.append(valu('v_add_f32', a, a, tmp))
    reduce32(acc)
    mean, sq, dd = V(46), V(47), V(72)
    inv640 = hex(struct.unpack('<I', struct.pack('<f', 1.0 / 640))[0])
    L += [valu('v_mul_f32', mean, inv640, acc), valu('v_mov_b32', sq, 0)]
    for i in range(24):
        if i == 16:
            L += cp(half)
        L += [valu('v_sub_f32', dd, e[i], mean), valu('v_fmac_f32', sq, dd, dd)]
    L += cp(full)
    reduce32(sq)
    mb, sd, rs = V(73), V(74), V(75)
    eps = hex(struct.unpack('<I', struct.pack('<f', 1e-5))[0])
    L += [valu('v_mul_f32', sq, inv640, sq), valu('v_cvt_pk_bf16_f32', tmp, mean, sq),
          valu('v_lshlrev_b32', mb, 16, tmp), valu('v_and_b32', sq, '0xffff0000', tmp),
          valu('v_add_f32', sq, eps, sq), valu('v_cvt_pk_bf16_f32', tmp, sq, sq), valu('v_lshlrev_b32', sq, 16, tmp),
          valu('v_sqrt_f32', sd, sq), valu('v_cvt_pk_bf16_f32', tmp, sd, sd), valu('v_lshlrev_b32', sd, 16, tmp),
          valu('v_rcp_f32', rs, sd)]
    q0, q1, r0, r1 = V(76), V(77), V(78), V(79)
    for n in range(3):
        for d in range(4):
            a, b = e[8 * n + 2 * d], e[8 * n + 2 * d + 1]
            L += [valu('v_sub_f32', a, a, mb), valu('v_sub_f32', b, b, mb), valu('v_cvt_pk_bf16_f32', tmp, a, b),
                  valu('v_lshlrev_b32', a, 16, tmp), valu('v_and_b32', b, '0xffff0000', tmp),
                  valu('v_mul_f32', q0, a, rs), valu('v_mul_f32', q1, b, rs),
                  raw(f'v_fma_f32 {r0}, -{q0}, {sd}, {a}', 'valu', rd=['v76', 'v74'] + a.regs(), wr=['v78']),
                  raw(f'v_fma_f32 {r1}, -{q1}, {sd}, {b}', 'valu', rd=['v77', 'v74'] + b.regs(), wr=['v79']),
                  valu('v_fmac_f32', q0, r0, rs), valu('v_fmac_f32', q1, r1, rs),
                  valu('v_cvt_pk_bf16_f32', xr[n][d], q0, q1)]
    L += [valu('v_lshrrev_b32', t0, 6, row), valu('v_mul_u32_u24', t0, 20, t0), valu('v_bfe_u32', t1, lane, 2, 3),
          valu('v_add_u32', t0, t0, t1), valu('v_bfe_u32', t1, row, 4, 2), valu('v_lshl_add_u32', t0, t0, 2, t1),
          valu('v_and_b32', t1, 3, lane), valu('v_and_b32', t2, 15, row), valu('v_lshl_add_u32', t1, t1, 4, t2),
          valu('v_lshlrev_b32', t1, 4, t1), valu('v_lshl_add_u32', t0, t0, 10, t1)]
    L += [salu('s_mov_b32', sT0, hex(XN)), vstore(xr[0], t0, sWS, sT0, flags='sc1'),
          salu('s_mov_b32', sT1, hex(XN + 32768)), vstore(xr[1], t0, sWS, sT1, flags='sc1')]
    L += cp(half)
    L += [salu('s_mov_b32', sT0, hex(XN + 65536)), vstore(xr[2], t0, sWS, sT0, flags='sc1')]
    L += cp(full)
    nlater = len([i for i in L if i.k in VMEM]) - nfirst
    return linear(L), nlater, late


def KS(): return int(OPT['kvstep'])


def kv_dma_c(L, s, g0=None):
    out = []
    for q in range(8):
        out.append(piece(L, vC1 if q & 1 else vC0, sC, sB[0], q * 8192 + s * 128, sB[2], (s & 1) * 32 * K1 + q * K1,
                         tag=(f'c{s & 1}', s), dl=None if g0 is None else g0 + 3 + KS() * q,
                         rel=None if g0 is None else g0 + KS() * q))
    return out


def kv_dma_w(L, s, g0=None):
    out = []
    for q in range(8):
        ks, m, hf = q >> 2, (q >> 1) & 1, q & 1
        out.append(piece(L, vW, sWKV, sB[1], (64 * s + 32 * ks + 16 * m + 4 * hf) * 8192, sB[3],
                         (s & 1) * 32 * K1 + q * K1, tag=(f'w{s & 1}', s),
                         dl=None if g0 is None else g0 + 3 + KS() * (8 + q),
                         rel=None if g0 is None else g0 + KS() * (8 + q)))
    return out


def kv_acc(i, jj):
    return A(4 * jj, 4) if i == 0 else V(32 + ((i - 1) * 8 + jj) * 4, 4)


def kv_Y(par, jj, ks): return A(32 + 64 * par + (jj * 2 + ks) * 4, 4)
def kv_X(n, ks): return A(160 + 8 * (n % 3) + 4 * ks, 4)


def kv_readY(L, s, g0=None):
    n = 0
    for jj in range(8):
        for ks in range(2):
            for hf in range(2):
                off = (s & 1) * 32 * K1 + (16 * K1 if jj >= 4 else 0) + ks * 4096 + hf * K1
                L.append(ds_tr(kv_Y(s & 1, jj, ks)[2 * hf:2 * hf + 2], vY[jj & 3], off, tag=(f'w{s & 1}', s),
                               rel=None if g0 is None else g0 + 16 + 3 * n))
                n += 1


def kv_readX(L, s, i):
    for ks in range(2):
        L.append(ds_read(kv_X(s * 8 + i, ks), vX[ks], (s & 1) * 32 * K1 + i * 2048, tag=(f'c{s & 1}', s)))


def kv_mfma(L, s, i):
    for jj in range(8):
        for ks in range(2):
            acc = kv_acc(i, jj)
            c = 0 if (s == 0 and ks == 0) else acc
            x, y = kv_X(s * 8 + i, ks), kv_Y(s & 1, jj, ks)
            L.append(mfma(acc, y, x, c) if jj < 4 else mfma(acc, x, y, c))


_tset = [0]


def pack2(L, b0, b1, dest=None):
    if dest is not None:
        d = dest
        L += [valu('v_cvt_pk_bf16_f32', d[3], b1[2], b1[3]), valu('v_cvt_pk_bf16_f32', d[2], b1[0], b1[1]),
              valu('v_cvt_pk_bf16_f32', d[0], b0[0], b0[1]), valu('v_cvt_pk_bf16_f32', d[1], b0[2], b0[3])]
        return d
    if b0.k == 'a' or b1.k == 'a':
        _tset[0] ^= 1
        t = V(16 + 8 * _tset[0], 8)
        s0, s1 = b0, b1
        if b0.k == 'a':
            for r in range(4):
                L.append(valu('v_accvgpr_read_b32', t[r], b0[r]))
            s0 = t[0:4]
        if b1.k == 'a':
            for r in range(4):
                L.append(valu('v_accvgpr_read_b32', t[4 + r], b1[r]))
            s1 = t[4:8]
        d = t[0:4]
    else:
        s0, s1, d = b0, b1, b0
    L += [valu('v_cvt_pk_bf16_f32', d[0], s0[0], s0[1]), valu('v_cvt_pk_bf16_f32', d[1], s0[2], s0[3]),
          valu('v_cvt_pk_bf16_f32', d[2], s1[0], s1[1]), valu('v_cvt_pk_bf16_f32', d[3], s1[2], s1[3])]
    return d


def kv_epi(L, u, g0):
    groups = []
    for i in (2 * u, 2 * u + 1) if u < 3 else (7, 6):
        for dcl in range(2):
            b0, b1 = kv_acc(i, 2 * dcl), kv_acc(i, 2 * dcl + 1)
            dest = kv_acc(7, 2 * dcl + 1) if i == 6 else None
            groups.append((b0, b1, dest, sB[5], (i >> 2) * 32 * K1 + (i & 3) * 4 * K1 + dcl * K1))
    for jj in range(4, 8):
        b0, b1 = kv_acc(2 * u, jj), kv_acc(2 * u + 1, jj)
        groups.append((b0, b1, b1 if u == 3 else None, sB[6], (u >> 1) * 32 * K1 + (u & 1) * K1 + (jj - 4) * 2 * K1))
    out = []
    for n, (b0, b1, dest, base, off) in enumerate(groups):
        d = pack2(L, b0, b1, dest)
        if u == 0:
            kv_store(L, (d, base, off), g0 + 11 * n)
            continue
        if u < 3:
            h = A((64 if u == 1 else 0) + 4 * n, 4)
            for r in range(4):
                L.append(valu('v_accvgpr_write_b32', h[r], d[r]))
            d = h
        out.append((d, base, off))
    return out


def kv_store(L, grp, g):
    d, base, off = grp
    t = rot()
    L.append(salu('s_add_u32', t, base, hex(off), rel=g - 3))
    L.append(vstore(d, vL16, sWS, t, flags='sc1', rel=g, dl=g + 4))
    return L[-1]


def qh_acc(jj, qb): return V(32 + (jj * 4 + qb) * 4, 4)
def qh_xn(s, ks, qb): return A((208, 32, 96)[s % 3] + (ks * 4 + qb) * 4, 4)


def qh_W(n, ks):
    if n >= 9 * 12:
        return V(224 + 8 * (n % 4) + 4 * ks, 4)
    return A((184, 192, 200, 240, 248)[n % 5] + 4 * ks, 4)


def aO(db, qb): return A((db * 4 + qb) * 4, 4)
def aL(qb): return A(128 + 4 * qb, 4)
def aQ(qb, dc): return A(144 + (qb * 4 + dc) * 4, 4)
def aF(n): return A(208 + 4 * (n % 12), 4)


def qh_setup(L):
    L += [salu('s_sub_u32', sT0, 15, sP), salu('s_lshl_b32', sT0, sT0, 1), salu('s_lshl_b32', sT1, sP, 1),
          glue([scmp('s_cmp_lt_u32', sW, 2), salu('s_cselect_b32', sRT2, sT0, sT1)]),
          salu('s_and_b32', sT0, sW, 1), salu('s_add_u32', sRT2, sRT2, sT0),
          salu('s_mul_i32', sB[0], sRT2, 20 * 4096),
          salu('s_lshl_b32', sB[1], sH, 8), salu('s_lshr_b32', sT1, sW, 1), salu('s_lshl_b32', sT1, sT1, 7),
          salu('s_add_u32', sB[1], sB[1], sT1), salu('s_lshl_b32', sT0, sT0, 18), salu('s_add_u32', sB[1], sB[1], sT0),
          salu('s_lshl_b32', sB[3], sW, 12), salu('s_add_u32', sB[3], sB[3], hex(QH_W)),
          salu('s_mul_i32', sB[2], sW, 16 * 3456), salu('s_lshl_b32', sT0, sH, 7), salu('s_add_u32', sB[2], sB[2], sT0),
          glue([scmp('s_cmp_lt_u32', sH, 27), salu('s_cselect_b32', sB[2], sB[2], hex(OOB))]),
          salu('s_lshl_b32', sB[7], sW, 11), salu('s_add_u32', sB[7], sB[7], hex(QH_W + 16 * K1))]
    if XN:
        L.append(salu('s_add_u32', sB[0], sB[0], hex(XN)))


def pace(g0, n):
    st = int(OPT['qhstep'])
    return {} if g0 is None else dict(dl=g0 + 6 + st * n, rel=g0 + 2 + st * n)


def qh_loads(L, s, g0=None, parked=()):
    out = []
    sl = (s % 3) * 24 * K1
    parked = list(parked)
    n = [0]

    def step():
        if parked and n[0] % 4 == 1:
            kv_store(L, parked.pop(0), pace(g0, n[0])['rel'])
            n[0] += 1
        n[0] += 1
        return pace(g0, n[0] - 1)
    for m in range(2):
        for hf in range(2):
            out.append(piece(L, vW, sWQ, sB[1], (64 * s + 16 * m + 4 * hf) * 8192, sB[3], sl + (m * 2 + hf) * K1,
                             tag=(f'q{s % 3}', s), **step()))
    for hf in range(2):
        out.append(piece(L, vW1, sW1, sB[2], (64 * s + 4 * hf) * 3456, sB[7], sl + hf * K1, tag=(f'q{s % 3}', s),
                         **step()))
    for ks in range(2):
        t = sQ[ks]
        L.append(salu('s_add_u32', t, sB[0], hex((2 * s + ks) * 4096)))
        for qb in range(4):
            kw = step()
            out.append(vload(qh_xn(s, ks, qb), vL16, sWS, t, off=qb * K1, flags='sc1', **kw))
            L.append(out[-1])
    while parked:
        kv_store(L, parked.pop(0), pace(g0, n[0])['rel'])
        n[0] += 1
    return out


sQ = [S(94), S(93)]


def qh_readW(L, s, jj):
    for ks in range(2):
        for hf in range(2):
            off = QH_W + (s % 3) * 24 * K1 + (jj >> 2) * 8 * K1 + ks * 4096 + hf * K1
            ad = vYQ[jj & 3]
            if off >= 48 * K1:
                off -= 48 * K1
                ad = vY[jj & 3]
            L.append(ds_tr(qh_W(s * 12 + jj, ks)[2 * hf:2 * hf + 2], ad, off, tag=(f'q{s % 3}', s)))


vYQ = [V(6), V(7), V(2), V(3)]


def qh_mfma(L, s, jj):
    for qb in range(4):
        for ks in range(2):
            acc = qh_acc(jj, qb)
            L.append(mfma(acc, qh_W(s * 12 + jj, ks), qh_xn(s, ks, qb), 0 if (s == 0 and ks == 0) else acc))


def qh_epi_q(L, dc):
    for qb in range(4):
        b0, b1 = qh_acc(2 * dc, qb), qh_acc(2 * dc + 1, qb)
        for b in (b0, b1):
            for r in range(4):
                L.append(valu('v_mul_f32', b[r], hex(SCALE), b[r]))
        d = pack2(L, b0, b1)
        for r in range(4):
            L.append(valu('v_accvgpr_write_b32', aQ(qb, dc)[r], d[r]))
        L.append(ds_write(vQX, d, (qb * 4 + dc) * K1))


vQX = V(5)


def qh_epi_h(L, fc):
    st = []
    t = rot()
    L.append(salu('s_add_u32', t, sB[4], hex(fc * 4096)))
    for qb in range(4):
        d = pack2(L, qh_acc(8 + 2 * fc, qb), qh_acc(9 + 2 * fc, qb))
        for r in range(4):
            L.append(valu('v_pk_max_i16', d[r], d[r], 0))
        st.append(vstore(d, vL16, sWS, t, off=qb * K1, flags='sc1'))
        L.append(st[-1])
    return st


sRs, sRl, sRd, sRn = S(97), S(100), S(101), S(3)


def relayout_setup(L):
    L += [salu('s_and_b32', sT0, sWG, 127), salu('s_mul_i32', sRs, sT0, 32 * 1280),
          salu('s_and_b32', sT0, sW, 1), salu('s_mul_i32', sT0, sT0, 16 * 1280), salu('s_add_u32', sRs, sRs, sT0),
          salu('s_lshr_b32', sT0, sW, 1), salu('s_mul_i32', sT0, sT0, 8 * 1280), salu('s_add_u32', sRs, sRs, sT0),
          salu('s_mul_i32', sRd, sWG, 5 * K1), salu('s_add_u32', sRd, sRd, hex(WP)),
          scmp('s_cmp_lt_u32', sWG, 182), salu('s_cselect_b32', sRs, sRs, hex(OOB)),
          salu('s_cselect_b32', sRd, sRd, hex(OOB)),
          salu('s_lshl_b32', sRl, sW, 10), salu('s_add_u32', sRl, sRl, hex(QH_R))]


def relayout_dma(L, cgs, g0):
    out = []
    for n, cg in enumerate(cgs):
        out.append(piece(L, vWR, sWR, sRs, cg * 128, sRl, (cg & 7) * 4096, tag=('r', cgs[0]),
                         dl=g0 + 3 + 4 * n, rel=g0 + 4 * n))
    return out


def relayout_out(L, cgs, g0):
    st = []
    for n, cg in enumerate(cgs):
        d = A(184 + 4 * n, 4)
        for hf in range(2):
            L.append(ds_tr(d[2 * hf:2 * hf + 2], vYR, (cg & 7) * 4096 + hf * K1, tag=('r', cgs[0]), rel=g0 - 40 + 4 * n))
        t = rot()
        L += [salu('s_add_u32', sRn, sW, 4 * cg), salu('s_mul_i32', t, sRn, 205), salu('s_lshr_b32', t, t, 10),
              salu('s_mul_i32', t, t, 905), salu('s_add_u32', t, t, sRn), salu('s_lshl_b32', t, t, 10),
              salu('s_add_u32', t, t, sRd)]
        st.append(vstore(d, vL16, sWS, t, flags='sc1', rel=g0 + 5 * n, dl=g0 + 5 * n + 3))
        L.append(st[-1])
    return st


def gen_proj(first, late):
    L = []
    L += [salu('s_lshl_b32', sT0, sB[9], 11), salu('s_add_u32', sB[5], sB[4], sT0),
          salu('s_lshl_b32', sT0, sB[9], 13), salu('s_add_u32', sB[6], sB[4], sT0),
          salu('s_add_u32', sB[6], sB[6], hex(16 * K1))]
    relayout_setup(L)
    for i in L:
        i.bb = True
    L += [wait(vm=first, lg=0, fence=True), barrier()]
    stamp(L, 1)
    n0 = len(L)
    kv_readY(L, 0)
    for k, i in enumerate(L[n0:]):
        i.bb = True
    L += [wait(lg=0, fence=True), barrier()]
    g = 0
    parked = []
    need = []
    for s in range(8):
        if s:
            L += [wait_for(L, need, lg=0, fence=True), barrier()]
            stamp(L)
        if s == 1:
            L.append(atomic_add(vOne, vSig, sDBG, 0))
        if s == 7:
            poll(L, 'A', sDBG, 0, 256, V(30), V(31), sampled=True)
        kv_readX(L, s, 0)
        if s:
            kv_mfma(L, s - 1, 7)
            g += 16
        g0 = g - (16 if s else 0)
        need = []
        if s + 1 < 8:
            need += kv_dma_c(L, s + 1, g0)
        if s + 2 < 8:
            need += kv_dma_w(L, s + 2, g0)
        late(L, s, g0 + 84)
        if s == 1:
            relayout_dma(L, list(range(8)), g0 + 88)
        if s == 3:
            relayout_out(L, list(range(8)), g0 + 84)
        if s == 4:
            relayout_dma(L, [8, 9], g0 + 88)
        if s + 1 < 8:
            kv_readY(L, s + 1, g0)
        if s == 6:
            need.append(poll_issue(L, sDBG, 0, V(30), V(31), rel=g0 + 50))
            relayout_out(L, [8, 9], g0 + 84)
        if s == 7:
            qh_setup(L)
            ld = {0: qh_loads(L, 0, g0 + 4)}
        for i in range(7):
            kv_readX(L, s, i + 1)
            kv_mfma(L, s, i)
            g += 16
            if s == 7 and i in (1, 3, 5):
                parked += kv_epi(L, i >> 1, g + 6)
            if s == 7 and i == 2:
                pass
    ld[1] = qh_loads(L, 1, g - 60)
    L.append(salu('s_lshl_b32', sT1, sB[9], 13))
    for cb in range(4):
        L.append(valu('v_subrev_u32', vYQ[cb], sT1, vY[cb]))
        L.append(valu('v_add_u32', vY[cb], hex(48 * K1), vYQ[cb]))
    for s in range(10):
        L += [wait_for(L, ld[s] + ([smp] if s == 9 else []), lg=0, fence=True), barrier()]
        stamp(L)
        if s == 7:
            L += [salu('s_lshl_b32', sT1, sH, 8), salu('s_add_u32', sT1, sT1, hex(CNT)),
                  atomic_add(vOne, vSig, sWS, sT1)]
        qh_readW(L, s, 0)
        qh_readW(L, s, 1)
        if s == 0:
            kv_mfma(L, 7, 7)
            g0 = g
            g += 16
            parked += kv_epi(L, 3, g)
        else:
            qh_mfma(L, s - 1, 11)
            g0 = g
            g += 8
        if s + 2 < 10:
            ld[s + 2] = qh_loads(L, s + 2, g0, parked[:5])
            del parked[:5]
        if s == 8:
            L += [salu('s_mul_i32', sB[4], sRT2, 182 * 4096), salu('s_lshl_b32', sT1, sH, 13),
                  salu('s_add_u32', sB[4], sB[4], sT1), salu('s_add_u32', sB[4], sB[4], hex(CH + 128 * 4096)),
                  glue([scmp('s_cmp_lt_u32', sH, 27), salu('s_cselect_b32', sB[4], sB[4], hex(OOB))]),
                  salu('s_lshl_b32', sT1, sW, 14), salu('s_add_u32', sT1, sT1, hex(QX)),
                  valu('v_add_u32', vQX, sT1, vL16),
                  salu('s_lshl_b32', sB[7], sH, 8), salu('s_add_u32', sB[7], sB[7], hex(CNT))]
            smp = poll_issue(L, sWS, sB[7], V(30), V(31), rel=g0 + 50)
        if s == 9:
            att_setup(L, g)
        for jj in range(11):
            if jj + 2 < 12:
                qh_readW(L, s, jj + 2)
            qh_mfma(L, s, jj)
            g += 8
            if s == 9 and jj in (1, 3, 5, 7):
                qh_epi_q(L, jj >> 1)
            if s == 9 and jj == 9:
                qh_epi_h(L, 0)
    assert not parked
    qh_mfma(L, 9, 11)
    qh_epi_h(L, 1)
    return schedule(L, verbose='proj')


def vS(par, kvb, qb): return V(16 + 64 * par + (kvb * 4 + qb) * 4, 4)
def vP(par, qb, kc): return V(144 + 32 * par + (qb * 2 + kc) * 4, 4)
def vNM(qb): return V(208 + 4 * qb, 4)


vOnes = V(224, 4)
vTmp = V(228, 24)
sHB, sVsrc, sKsrc, sLd = sB[0], sB[1], sB[2], sB[3]
sCtx = sB[5]


def att_setup(L, g0):
    poll(L, 'B', sWS, sB[7], 8, V(30), V(31), sampled=True)
    L += [salu('s_lshl_b32', sHB, sH, 20), salu('s_add_u32', sHB, sHB, hex(KV)),
          salu('s_lshl_b32', sT1, sW, 12), salu('s_add_u32', sKsrc, sHB, sT1), salu('s_mov_b32', 'm0', sT1)]
    for q in range(4):
        L.append(dma(vL16, sWS, sKsrc, off=q * K1, flags='sc1', tag=('K00', 't0'), dl=g0 + 12 + 2 * q))


def att_dma(L, par, which='VK', stream=None, g0=1, step=None, tags=(None, None), both=False):
    n = 0
    step = step or int(OPT['attstep'])
    for what, src, lds, tg in (('V', sVsrc, 32 * K1 + par * 16 * K1, tags[0]), ('K', sKsrc, (par ^ 1) * 16 * K1, tags[1])):
        if what not in which:
            continue
        for grp in range(4 if both else 2):
            t = rot()
            L += [salu('s_add_u32', 'm0', sLd, hex(lds + grp * 4 * K1)), salu('s_add_u32', t, src, hex(grp * 4 * K1))]
            for q in range(4):
                L.append(dma(vL16, sWS, t, off=q * K1, flags='sc1', tag=tg, dl=g0 + step * n + 3, rel=g0 + step * n))
                n += 1
        L.append(salu('s_add_u32', src, src, hex(32 * K1)))


def readK(L, par, kvb, dc, tag):
    L.append(ds_read(aF(kvb * 4 + dc), vKV, par * 16 * K1 + (kvb * 4 + dc) * K1, tag=tag))


def readV(L, par, db, kc, tag, slot=None):
    f = aF(16 + db * 2 + kc) if slot is None else slot
    L.append(ds_read(f, vKV, 32 * K1 + (par ^ 1) * 16 * K1 + (db * 2 + kc) * K1, tag=tag))
    return f


def tail(L, par):
    for qb in range(4):
        for kc in range(2):
            L.append(mfma(aL(qb), vOnes, vP(par, qb, kc), aL(qb)))
    for qb in range(4):
        for kc in range(2):
            L.append(mfma(aO(7, qb), aF(16 + 14 + kc), vP(par, qb, kc), aO(7, qb)))


def softmax_blocks(L, par, kvbs, diag=False):
    for kvb in kvbs:
        for qb in range(4):
            s = vS(par, kvb, qb)
            p = vP(par, qb, kvb >> 1)
            o = 2 * (kvb & 1)
            for r in range(4):
                L.append(valu('v_exp_f32', s[r], s[r]))
                if r & 1:
                    L.append(valu('v_cvt_pk_bf16_f32', p[o + (r >> 1)], s[r - 1], s[r]))


def xphase(L, par, mode, tag, skip_first_reads=False):
    for kvb in range(4):
        if not (skip_first_reads and kvb == 0):
            for dc in range(4):
                readK(L, par, kvb, dc, tag)
        for qb in range(4):
            s = vS(par, kvb, qb)
            if mode == 'd' and kvb > qb:
                for r in range(4):
                    L.append(valu('v_mov_b32', s[r], hex(NEGBIG)))
                continue
            if mode == 'd' and kvb == qb:
                for r in range(4):
                    L.append(cndmask(s[r], vNegBig, vNM(qb)[r], sMask[r], tag='ci'))
            for dc in range(4):
                c = s if dc else (0 if mode == 'z' else (s if (mode == 'd' and kvb == qb) else vNM(qb)))
                L.append(mfma(s, aF(kvb * 4 + dc), aQ(qb, dc), c))


vNegBig = V(5)


def yhead(L, par, tag):
    for db in range(8):
        fr = [readV(L, par, db, kc, tag) for kc in range(2)]
        if db == 7:
            break
        for qb in range(4):
            for kc in range(2):
                L.append(mfma(aO(db, qb), fr[kc], vP(par ^ 1, qb, kc), aO(db, qb)))


def yfull(L, par, tag, diag=False):
    n = 0
    for kc in range(2):
        qbs = (2, 3) if (diag and kc == 1) else range(4)
        for qb in qbs:
            L.append(mfma(aL(qb), vOnes, vP(par ^ 1, qb, kc), aL(qb)))
        for db in range(8):
            f = readV(L, par, db, kc, tag, slot=aF((0, 1, 2, 3, 4, 5, 8, 9, 10, 11, 6, 7)[n % 12]))
            n += 1
            for qb in qbs:
                L.append(mfma(aO(db, qb), f, vP(par ^ 1, qb, kc), aO(db, qb)))


def head(L):
    L += [wait(vm=0, lg=0, fence=True), barrier()]
    stamp(L, t=vTmp[23])


def tg(stream, par):
    return (f'K{stream}{par}', None), (f'V{stream}{par ^ 1}', None)


def body_normal(par, mode, with_dma, name):
    L = [label(name)]
    head(L)
    tk, tv = tg('x', par)
    for dc in range(4):
        readK(L, par, 0, dc, tk)
    tail(L, par)
    if with_dma:
        att_dma(L, par, tags=((f'Vx{par}', None), (f'Kx{par ^ 1}', None)))
    softmax_blocks(L, par ^ 1, (2, 3))
    xphase(L, par, mode, tk, skip_first_reads=True)
    softmax_blocks(L, par, (0, 1))
    yhead(L, par, tv)
    L.append(salu('s_add_u32', sJ, sJ, 1))
    return schedule(L, verbose=name)


def zero_state(L, par_next):
    z = vP(par_next, 0, 0)
    for qb in range(4):
        for kc in range(2):
            for r in range(4):
                L.append(valu('v_mov_b32', vP(par_next, qb, kc)[r], 0))
    for n in range(9):
        L.append(mfma32(A(16 * n, 16), z, z, 0))
    for kc in range(2):
        for r in range(4):
            L.append(valu('v_accvgpr_write_b32', aF(30 + kc)[r], 0))


def rowmax(L, par, dst):
    for qb in range(4):
        vals = [vS(par, kvb, qb)[r] for kvb in range(4) for r in range(4)]
        m = dst[qb]
        L.append(valu('v_max3_f32', m, vals[0], vals[1], vals[2]))
        for n in range(3, 15, 2):
            L.append(valu('v_max3_f32', m, m, vals[n], vals[n + 1]))
        L.append(valu('v_max_f32', m, m, vals[15]))
    for op in ('v_permlane16_swap_b32', 'v_permlane32_swap_b32'):
        for qb in range(4):
            L.append(valu('v_mov_b32', vTmp[8 + qb], dst[qb]))
        for qb in range(4):
            L.append(permswap(op, dst[qb], vTmp[8 + qb]))
        for qb in range(4):
            L.append(valu('v_max_f32', dst[qb], dst[qb], vTmp[8 + qb]))


def mask_diag(L, par):
    for kvb in range(4):
        for qb in range(4):
            s = vS(par, kvb, qb)
            for r in range(4):
                if kvb > qb:
                    L.append(valu('v_mov_b32', s[r], hex(NEGBIG)))
                elif kvb == qb:
                    L.append(cndmask(s[r], vNegBig, s[r], sMask[r]))


def body_first():
    pre = []
    t0, t1 = vTmp[0], vTmp[1]
    pre += [valu('v_and_b32', t0, 15, vTid), valu('v_bfe_u32', t1, vTid, 4, 2), valu('v_lshlrev_b32', t1, 2, t1)]
    for r in range(4):
        pre += [vcmp('v_cmp_le_u32', sMask[r], t1, t0), valu('v_add_u32', t1, 1, t1)]
    pre += [valu('v_mov_b32', vNegBig, hex(NEGBIG)), valu('v_mov_b32', vKV, vL16),
            valu('v_and_b32', t0, 63, vTid), valu('v_mov_b32', t1, hex(OOB)), vcmp('v_cmp_eq_u32', 'vcc', 0, t0)]
    pre.append(raw(f'v_cndmask_b32_e64 {vSigW}, {t1}, 0, vcc', 'valu', rd=t1.regs() + ['vcc'], wr=vSigW.regs()))
    for r in range(4):
        pre.append(valu('v_mov_b32', vOnes[r], '0x3f803f80'))
    pre += [salu('s_and_b32', sT0, sW, 1), salu('s_lshl_b32', sT0, sT0, 13), salu('s_add_u32', sVsrc, sHB, sT0),
            salu('s_add_u32', sKsrc, sVsrc, hex(32 * K1)), salu('s_add_u32', sVsrc, sVsrc, hex(16 * K1)),
            salu('s_lshr_b32', sT1, sW, 1), salu('s_lshl_b32', sT1, sT1, 16), salu('s_add_u32', sLd, sT0, sT1),
            salu('s_mov_b32', sJ, 0),
            salu('s_mul_i32', sCtx, sRT2, 182 * 4096), salu('s_lshl_b32', sT1, sH, 14),
            salu('s_add_u32', sCtx, sCtx, sT1), salu('s_add_u32', sCtx, sCtx, hex(CH))]
    pre += [wait(vm=8, lg=0, fence=True), barrier()]
    stamp(pre, 3)
    pre += [scmp('s_cmp_lt_u32', sW, 2), branch('s_cbranch_scc0', 'L_first_g1')]
    pre = linear(pre)
    out = {}
    for role in ('g0', 'g1'):
        L = [label(f'L_first_{role}')]
        if role == 'g0':
            att_dma(L, 0, tags=(('Vx0', None), ('Kx1', None)))
        xphase(L, 0, 'z', ('K00', 't0'))
        zero_state(L, 1)
        L1 = schedule(L, verbose='first_' + role)
        L = []
        if role == 'g1':
            L += [salu('s_lshl_b32', sT0, sP, 2), salu('s_add_u32', sT0, sT0, sW), scmp('s_cmp_eq_u32', sT0, 2),
                  branch('s_cbranch_scc0', 'L_first_nomask'), nop(7)]
            M = []
            mask_diag(M, 0)
            L2 = linear(L)
            L3 = linear(M)
            L = [label('L_first_nomask')]
        L.insert(len(L), nop(7))
        m = vTmp[4:8]
        rowmax(L, 0, m)
        for qb in range(4):
            for r in range(4):
                L.append(valu('v_sub_f32', vNM(qb)[r], 0, m[qb]))
        if role == 'g0':
            L += [salu('s_lshl_b32', sT0, sW, 10), salu('s_add_u32', sT0, sT0, hex(MX)),
                  valu('v_add_u32', vTmp[0], sT0, vL16), ds_write(vTmp[0], m)]
        for kvb in range(4):
            for qb in range(4):
                for r in range(4):
                    L.append(valu('v_sub_f32', vS(0, kvb, qb)[r], vS(0, kvb, qb)[r], m[qb]))
        softmax_blocks(L, 0, (0, 1))
        L.append(salu('s_mov_b32', sJ, 1))
        L4 = linear(L)
        if role == 'g0':
            out['g0'] = (L1 + L4,)
        else:
            out['g1'] = (L1, L2, L3, L4)
    return pre, out


def normalise_store(L, qbs, tbase, srcs=None, rinv=None):
    st = []
    for qb in qbs:
        ri = V(tbase + 16 + qb % 4)
        if rinv is None:
            L += [valu('v_accvgpr_read_b32', ri, aL(qb)[0]), valu('v_rcp_f32', ri, ri)]
        for dc in range(4):
            t = V(tbase + 8 * (dc & 1), 8)
            for x in range(2):
                for r in range(4):
                    L.append(valu('v_accvgpr_read_b32', t[4 * x + r], aO(2 * dc + x, qb)[r]))
            for r in range(8):
                L.append(valu('v_mul_f32', t[r], t[r], ri))
            d = pack2(L, t[0:4], t[4:8])
            s = rot()
            L.append(salu('s_add_u32', s, sCtx, hex(dc * 4096)))
            st.append(vstore(d, vL16, sWS, s, off=qb * K1, flags='sc1'))
            L.append(st[-1])
    return st


def check_l(L, name, lvals):
    t = vTmp[0]
    if len(lvals) == 4:
        L += [valu('v_max3_f32', t, lvals[0], lvals[1], lvals[2]), valu('v_max_f32', t, t, lvals[3])]
    else:
        L += [valu('v_max_f32', t, lvals[0], lvals[1])]
    L += [valu('v_add_f32', vTmp[1], lvals[0], lvals[1])]
    if len(lvals) == 4:
        L += [valu('v_add_f32', vTmp[1], vTmp[1], lvals[2]), valu('v_add_f32', vTmp[1], vTmp[1], lvals[3])]
    thr = hex(LTHR) if not OPT['force_fb'] else '0'
    L += [valu('v_mov_b32', vTmp[2], thr), vcmp('v_cmp_nlt_f32', 'vcc', vTmp[1], vTmp[2]),
          branch('s_cbranch_vccz', f'L_ok_{name}')]


def fallback_call(name, ret_id):
    return linear([salu('s_mov_b32', sRole, ret_id), branch('s_branch', 'L_fallback'), label(f'L_ret_{ret_id}')])


def gen_fallback(nret):
    L = [label('L_fallback')]
    fr = [V(80 + 4 * n, 4) for n in range(16)]
    m, mn, al = vTmp[12:16], vTmp[4:8], vTmp[16:20]
    sT, sSrc = sB[8], sB[9]
    L.append(wait(vm=0, lg=0))
    for n in range(144):
        L.append(valu('v_accvgpr_write_b32', A(n), 0, tag='ci'))
    for qb in range(4):
        L.append(valu('v_mov_b32', m[qb], hex(NEGBIG)))
    L += [salu('s_mov_b32', sT, 0), salu('s_mov_b32', sSrc, sHB), label('L_fb_loop')]
    for g in range(4):
        L.append(salu('s_add_u32', sT1, sSrc, hex(g * 4 * K1)))
        for q in range(4):
            L.append(vload(fr[4 * g + q], vL16, sWS, sT1, off=q * K1, flags='sc1'))
    L.append(wait(vm=0))
    for kvb in range(4):
        for qb in range(4):
            for dc in range(4):
                L.append(mfma(vS(0, kvb, qb), fr[kvb * 4 + dc], aQ(qb, dc), vS(0, kvb, qb) if dc else 0))
    for g in range(4):
        L.append(salu('s_add_u32', sT1, sSrc, hex(16 * K1 + g * 4 * K1)))
        for q in range(4):
            L.append(vload(fr[4 * g + q], vL16, sWS, sT1, off=q * K1, flags='sc1'))
    L += [nop(7), salu('s_add_u32', sT, sT, 1), scmp('s_cmp_eq_u32', sT, sNt), branch('s_cbranch_scc0', 'L_fb_nomask')]
    P1 = linear(L)
    M = []
    mask_diag(M, 0)
    P2 = linear(M)
    L = [label('L_fb_nomask')]
    rowmax(L, 0, mn)
    for qb in range(4):
        L += [valu('v_max_f32', mn[qb], mn[qb], m[qb]), valu('v_sub_f32', al[qb], m[qb], mn[qb]),
              valu('v_exp_f32', al[qb], al[qb]), valu('v_mov_b32', m[qb], mn[qb])]
    t = vTmp[0]
    for qb in range(4):
        regs = [aO(db, qb)[r] for db in range(8) for r in range(4)] + [aL(qb)[r] for r in range(4)]
        for a in regs:
            L += [valu('v_accvgpr_read_b32', t, a), valu('v_mul_f32', t, t, al[qb]), valu('v_accvgpr_write_b32', a, t, tag='ci')]
    for kvb in range(4):
        for qb in range(4):
            for r in range(4):
                L.append(valu('v_sub_f32', vS(0, kvb, qb)[r], vS(0, kvb, qb)[r], m[qb]))
    softmax_blocks(L, 0, range(4))
    L.append(wait(vm=0))
    for qb in range(4):
        for kc in range(2):
            L.append(mfma(aL(qb), vOnes, vP(0, qb, kc), aL(qb)))
    for db in range(8):
        for qb in range(4):
            for kc in range(2):
                L.append(mfma(aO(db, qb), fr[db * 2 + kc], vP(0, qb, kc), aO(db, qb)))
    L += [nop(7), salu('s_add_u32', sSrc, sSrc, hex(32 * K1)), scmp('s_cmp_lt_u32', sT, sNt),
          branch('s_cbranch_scc1', 'L_fb_loop')]
    for r in range(nret):
        L += [scmp('s_cmp_eq_u32', sRole, r), branch('s_cbranch_scc1', f'L_ret_{r}')]
    L.append(raw('s_endpgm', 'br', bb=True))
    return P1, P2, linear(L)


def body_t1(role):
    par = 1 if role == 'A' else 0
    name = f'L_t1_{role}'
    L = [label(name)]
    head(L)
    tk, tv = tg('x', par)
    if role == 'A':
        L += [salu('s_lshl_b32', sT0, sP, 16), salu('s_sub_u32', sKsrc, sHB, sT0),
              salu('s_add_u32', sKsrc, sKsrc, hex(31 * 32 * K1))]
        att_dma(L, par, which='K', both=True, tags=(None, (f'Ky{par ^ 1}', None)))
    else:
        set_stream1(L)
        att_dma(L, par, tags=((f'Vy{par}', None), (f'Ky{par ^ 1}', None)))
        fix_stream1(L)
    tail(L, par)
    softmax_blocks(L, par ^ 1, (2, 3))
    yfull(L, par, tv, diag=True)
    L1 = schedule(L, verbose=name)
    L = [nop(6)]
    lv = [vTmp[4 + qb] for qb in range(4)]
    for qb in range(4):
        L.append(valu('v_accvgpr_read_b32', lv[qb], aL(qb)[0]))
    L += [salu('s_lshl_b32', sNt, sP, 1), salu('s_add_u32', sNt, sNt, 1 if role == 'A' else 2)]
    check_l(L, f't1{role}', lv)
    L2 = linear(L)
    L3 = fallback_call(role, 0 if role == 'A' else 1)
    L = [label(f'L_ok_t1{role}')]
    src = 1 if role == 'A' else 0
    L.append(valu('v_add_u32', vTmp[20], hex(QX + src * 16 * K1), vL16))
    L.append(valu('v_add_u32', vTmp[21], hex(MX + src * K1), vL16))
    normalise_store(L, (0, 1), 16 + 64 * par)
    L.append(ds_read(vTmp[12:16], vTmp[21], 0))
    for qb in range(4):
        for dc in range(4):
            L.append(ds_read(aQ(qb, dc), vTmp[20], (qb * 4 + dc) * K1))
    for qb in range(4):
        for r in range(4):
            L.append(valu('v_sub_f32', vNM(qb)[r], 0, vTmp[12 + qb]))
    L += [valu('v_add_u32', vKV, hex(64 * K1), vL16), salu('s_add_u32', sJ, sJ, 1)]
    L4 = linear(L)
    return L1, L2, L3, L4


def set_stream1(L):
    L += [salu('s_and_b32', sT1, sW, 1), salu('s_lshl_b32', sT1, sT1, 13), salu('s_add_u32', sT1, sT1, sHB),
          salu('s_lshl_b32', sT0, sP, 16), salu('s_sub_u32', sVsrc, sT1, sT0),
          salu('s_add_u32', sVsrc, sVsrc, hex(31 * 32 * K1 + 16 * K1)),
          salu('s_add_u32', sKsrc, sT1, hex(17 * 32 * K1))]


def fix_stream1(L):
    L += [salu('s_sub_u32', sVsrc, sKsrc, hex(16 * K1))]


def after_t2(L, role):
    src = 1 if role == 'A' else 0
    L += [salu('s_sub_u32', sT0, 15, sP), salu('s_lshl_b32', sT0, sT0, 1), salu('s_add_u32', sT0, sT0, src),
          salu('s_mul_i32', sCtx, sT0, 182 * 4096), salu('s_lshl_b32', sT1, sH, 14),
          salu('s_add_u32', sCtx, sCtx, sT1), salu('s_add_u32', sCtx, sCtx, hex(CH)), salu('s_add_u32', sJ, sJ, 1)]


def body_t2(role, with_x=True):
    par = 0 if role == 'A' else 1
    name = f'L_t2_{role}' + ('' if with_x else '_nox')
    L = [label(name)]
    head(L)
    tk = (f'Ky{par}', None)
    if role == 'A':
        L += [salu('s_mov_b32', sT1, hex(CNT + 32 * 256)), atomic_add(vOne, vSigW, sWS, sT1)]
        set_stream1(L)
        att_dma(L, par, tags=((f'Vy{par}', None), (f'Ky{par ^ 1}', None)))
        fix_stream1(L)
    elif with_x:
        att_dma(L, par, tags=((f'Vy{par}', None), (f'Ky{par ^ 1}', None)))
    normalise_store(L, (2, 3), 16 + 64 * (par ^ 1))
    if with_x:
        xphase(L, par, 'd' if role == 'A' else 'n', tk)
    zero_state(L, par ^ 1)
    if with_x:
        softmax_blocks(L, par, (0, 1))
    after_t2(L, role)
    return schedule(L, verbose=name)


def body_fin():
    par = 1
    L = [label('L_fin')]
    head(L)
    tk, tv = tg('x', par)
    tail(L, par)
    softmax_blocks(L, par ^ 1, (2, 3))
    yfull(L, par, tv)
    return schedule(L, verbose='fin')


def gen_merge():
    out = {}
    pre = [label('L_merge'), wait(lg=0, fence=True), barrier()]
    stamp(pre, 4)
    pre += [salu('s_mul_i32', sT0, sW, 18 * K1), valu('v_add_u32', vTmp[20], sT0, vL16),
            salu('s_sub_u32', sT0, 3, sW), salu('s_mul_i32', sT0, sT0, 18 * K1), valu('v_add_u32', vTmp[21], sT0, vL16),
            salu('s_lshl_b32', sNt, sP, 1), salu('s_sub_u32', sNt, 31, sNt), salu('s_add_u32', sT0, sW, 1),
            salu('s_lshr_b32', sT0, sT0, 1), salu('s_and_b32', sT0, sT0, 1), salu('s_add_u32', sNt, sNt, sT0),
            scmp('s_cmp_lt_u32', sW, 2), branch('s_cbranch_scc0', 'L_merge_hi')]
    pre = linear(pre)
    for role, mine, other, rid in (('lo', (0, 1), (2, 3), 2), ('hi', (2, 3), (0, 1), 3)):
        L = [label(f'L_merge_{role}'), nop(4)]
        for x, qb in enumerate(other):
            for db in range(8):
                L.append(ds_write(vTmp[20], aO(db, qb), (x * 9 + db) * K1))
            L.append(ds_write(vTmp[20], aL(qb), (x * 9 + 8) * K1))
        L += [wait(lg=0, fence=True), barrier()]
        part = [V(16 + 4 * n, 4) for n in range(18)]
        for x in range(2):
            L.append(ds_read(part[x * 9 + 8], vTmp[21], (x * 9 + 8) * K1))
        for x in range(2):
            for db in range(8):
                L.append(ds_read(part[x * 9 + db], vTmp[21], (x * 9 + db) * K1))
        lv = [vTmp[4], vTmp[5]]
        for x, qb in enumerate(mine):
            L += [valu('v_accvgpr_read_b32', lv[x], aL(qb)[0]), valu('v_add_f32', lv[x], lv[x], part[x * 9 + 8][0])]
        check_l(L, f'm{role}', lv)
        L1 = linear(L)
        F = [wait(lg=0), salu('s_mov_b32', sRole, rid), branch('s_branch', 'L_fallback'), label(f'L_ret_{rid}')]
        normalise_store(F, mine, 96)
        F.append(branch('s_branch', 'L_k3'))
        L2 = linear(F)
        L = [label(f'L_ok_m{role}'), wait(lg=0)]
        for x, qb in enumerate(mine):
            L.append(valu('v_rcp_f32', lv[x], lv[x]))
        for x, qb in enumerate(mine):
            for dc in range(4):
                t = V(96 + 8 * (dc & 1), 8)
                for y in range(2):
                    for r in range(4):
                        L.append(valu('v_accvgpr_read_b32', t[4 * y + r], aO(2 * dc + y, qb)[r]))
                for y in range(2):
                    for r in range(4):
                        L.append(valu('v_add_f32', t[4 * y + r], t[4 * y + r], part[x * 9 + 2 * dc + y][r]))
                for r in range(8):
                    L.append(valu('v_mul_f32', t[r], t[r], lv[x]))
                d = pack2(L, t[0:4], t[4:8])
                s = rot()
                L += [salu('s_add_u32', s, sCtx, hex(dc * 4096)), vstore(d, vL16, sWS, s, off=qb * K1, flags='sc1')]
        if role == 'lo':
            L.append(branch('s_branch', 'L_k3'))
        L3 = linear(L)
        out[role] = (L1, L2, L3)
    return pre, out


def gen_k3():
    L = [label('L_k3')]
    stamp(L, 5)
    D = 6
    acc = lambda nb, qb: V(16 + (nb * 4 + qb) * 4, 4)
    buf = lambda n, f: A(36 * (n % D) + 4 * f, 4)
    sRT, sCT, sA, sBw, sDp = sB[0], sB[1], sB[2], sB[3], sB[4]
    vHi, vXo = V(6), V(7)
    xres = [V(96 + 2 * nb, 2) for nb in range(5)]
    L += [salu('s_and_b32', sT0, sWG, 7), salu('s_lshr_b32', sT1, sWG, 3),
          salu('s_lshr_b32', sRT, sT0, 1), salu('s_lshl_b32', sRT, sRT, 3), salu('s_lshr_b32', sCT, sT1, 2),
          salu('s_add_u32', sRT, sRT, sCT),
          salu('s_and_b32', sCT, sT0, 1), salu('s_lshl_b32', sCT, sCT, 2), salu('s_and_b32', sT1, sT1, 3),
          salu('s_add_u32', sCT, sCT, sT1),
          salu('s_mul_i32', sA, sRT, 182), salu('s_add_u32', sA, sA, sW), salu('s_lshl_b32', sA, sA, 12),
          salu('s_add_u32', sA, sA, hex(CH)),
          salu('s_mul_i32', sBw, sCT, 182), salu('s_add_u32', sBw, sBw, sW), salu('s_mul_i32', sBw, sBw, 5 * K1),
          salu('s_add_u32', sBw, sBw, hex(WP)),
          salu('s_lshr_b32', sT0, sRT, 1), salu('s_sub_u32', sT1, 15, sT0), salu('s_min_u32', sDp, sT0, sT1),
          salu('s_lshl_b32', sDp, sDp, 8), salu('s_add_u32', sDp, sDp, hex(CNT + 33 * 256)),
          valu('v_add_u32', vHi, 4096, vL16)]
    L += [valu('v_and_b32', V(8), 15, vTid), salu('s_lshl_b32', sT0, sRT, 2), salu('s_add_u32', sT0, sT0, sW),
          salu('s_lshl_b32', sT0, sT0, 4), valu('v_add_u32', V(8), sT0, V(8)), valu('v_mul_u32_u24', vXo, 1280, V(8)),
          valu('v_bfe_u32', V(8), vTid, 4, 2), valu('v_lshl_add_u32', vXo, V(8), 3, vXo),
          salu('s_mul_i32', sT0, sCT, 160), valu('v_add_u32', vXo, sT0, vXo)]
    L += [wait(vm=0), salu('s_lshl_b32', sT1, sP, 8), salu('s_add_u32', sT1, sT1, hex(CNT + 33 * 256)),
          atomic_add(vOne, vSigW, sWS, sT1), salu('s_mov_b32', sT1, hex(CNT + 32 * 256))]
    for i in L:
        i.bb = True
    poll(L, 'C', sWS, sT1, 256, V(110), V(111))
    kcs = [128 + 4 * n for n in range(14)] + [4 * n for n in range(32)]
    ld = {}

    def loads(n, g0=None):
        kc = kcs[n]
        ta, tb = rot(), rot()
        L.append(salu('s_add_u32', ta, sA, hex(kc * 4096)))
        L.append(salu('s_add_u32', tb, sBw, hex(kc * 5 * K1)))
        if n == 13:
            L.append(glue([scmp('s_cmp_lt_u32', sW, 2), salu('s_cselect_b32', ta, ta, hex(OOB)),
                           salu('s_cselect_b32', tb, tb, hex(OOB))]))
        o = []
        for f in range(5):
            o.append(vload(buf(n, f), vL16 if f < 4 else vHi, sWS, tb, off=(f & 3) * K1, flags='sc1'))
        for f in range(4):
            o.append(vload(buf(n, 5 + f), vL16, sWS, ta, off=f * K1, flags='sc1'))
        for k, x in enumerate(o):
            if g0 is not None:
                x.dl = g0 + 2 * k
                x.rel = g0 + 2 * k
            L.append(x)
        ld[n] = o
    for n in range(D - 1):
        loads(n)
    xl = [vload(xres[nb], vXo, sX, 0, off=32 * nb) for nb in range(5)]
    L += xl
    for n in range(46):
        L.append(wait_for(L, ld[n]))
        if n % 4 == 0:
            stamp(L, t=V(110))
        if n + D - 1 == 14:
            poll(L, 'D', sWS, sDp, 128, V(110), V(111))
        first = True
        for nb in range(5):
            for qb in range(4):
                L.append(mfma(acc(nb, qb), buf(n, nb), buf(n, 5 + qb), acc(nb, qb) if n else 0))
                if first and n + D - 1 < 46:
                    loads(n + D - 1, 20 * n)
                first = False
    L1 = schedule(L, verbose='k3')
    L = [barrier()]
    stamp(L, 6, V(110))
    L += [salu('s_mul_i32', sT0, sW, 20 * K1), valu('v_add_u32', V(8), sT0, vL16),
          salu('s_mul_i32', sT0, sW, 5 * K1), valu('v_add_u32', V(9), sT0, vL16),
          valu('v_add_u32', V(12), hex(40 * K1), V(9)), nop(4)]
    for nb in range(5):
        for qb in range(4):
            L.append(ds_write(V(8), acc(nb, qb), (qb * 5 + nb) * K1))
    L += [wait(lg=0), barrier()]
    part = lambda w, nb: V(112 + (w * 5 + nb) * 4, 4)
    for nb in range(5):
        for w in range(4):
            L.append(ds_read(part(w, nb), V(9) if w < 2 else V(12), ((w & 1) * 20 + nb) * K1))
    for nb in range(5):
        p0 = part(0, nb)
        for r in range(4):
            L += [valu('v_add_f32', p0[r], p0[r], part(1, nb)[r]),
                  valu('v_add_f32', part(2, nb)[r], part(2, nb)[r], part(3, nb)[r])]
        for d in range(2):
            L += [valu('v_lshlrev_b32', V(10), 16, xres[nb][d]), valu('v_and_b32', V(11), '0xffff0000', xres[nb][d]),
                  valu('v_add_f32', p0[2 * d], p0[2 * d], V(10)), valu('v_add_f32', p0[2 * d + 1], p0[2 * d + 1], V(11))]
        for r in range(4):
            L.append(valu('v_add_f32', p0[r], p0[r], part(2, nb)[r]))
        L += [valu('v_cvt_pk_bf16_f32', p0[0], p0[0], p0[1]), valu('v_cvt_pk_bf16_f32', p0[1], p0[2], p0[3]),
              vstore(p0[0:2], vXo, sOUT, 0, off=32 * nb)]
    stamp(L, 7, V(110))
    stamp(L, t=V(110), real=True)
    return L1 + linear(L)


def build():
    init, nlater, late = gen_init()
    proj = gen_proj(nlater, late)
    pre0, first = body_first()
    OD, ED = body_normal(1, 'n', True, 'L_od'), body_normal(0, 'n', True, 'L_ed')
    ON, EN = body_normal(1, 'n', False, 'L_on'), body_normal(0, 'n', False, 'L_en')
    EdN, OdN = body_normal(0, 'd', False, 'L_edn'), body_normal(1, 'd', False, 'L_odn')
    EdD = body_normal(0, 'd', True, 'L_edd')
    TA1, TB1 = body_t1('A'), body_t1('B')
    TA2, TB2, TB2n = body_t2('A'), body_t2('B'), body_t2('B', False)
    FIN = body_fin()
    mpre, mrg = gen_merge()
    K3 = gen_k3()
    FB = gen_fallback(4)

    def br(op, t): return [branch(op, t)]
    g_after_first_g0 = linear(br('s_branch', 'L_od'))
    g_after_first_g1 = linear([scmp('s_cmp_lg_u32', sP, 0), branch('s_cbranch_scc1', 'L_on'),
                               scmp('s_cmp_eq_u32', sW, 2), branch('s_cbranch_scc1', 'L_t1_A'),
                               branch('s_branch', 'L_odn')])
    g_on = linear([salu('s_lshl_b32', sT0, sP, 1), scmp('s_cmp_lg_u32', sJ, sT0), branch('s_cbranch_scc1', 'L_en'),
                   scmp('s_cmp_eq_u32', sW, 2), branch('s_cbranch_scc1', 'L_edn')])
    g_en = linear([salu('s_lshl_b32', sT0, sP, 1), salu('s_add_u32', sT0, sT0, 1), scmp('s_cmp_lg_u32', sJ, sT0),
                   branch('s_cbranch_scc1', 'L_on')])
    g_od = linear([scmp('s_cmp_lg_u32', sJ, 16), branch('s_cbranch_scc1', 'L_ed'),
                   scmp('s_cmp_eq_u32', sW, 3), branch('s_cbranch_scc1', 'L_edd'),
                   salu('s_lshl_b32', sT0, sP, 2), salu('s_add_u32', sT0, sT0, sW), scmp('s_cmp_eq_u32', sT0, 28),
                   branch('s_cbranch_scc1', 'L_edd')])
    g_ed = linear([scmp('s_cmp_lg_u32', sJ, 17), branch('s_cbranch_scc1', 'L_od'), branch('s_branch', 'L_fin')])
    g_ta2 = linear([scmp('s_cmp_lg_u32', sJ, 17), branch('s_cbranch_scc1', 'L_od'), branch('s_branch', 'L_fin')])
    g_tb1 = linear([scmp('s_cmp_eq_u32', sJ, 17), branch('s_cbranch_scc1', 'L_t2_B_nox')])
    g_tb2 = linear([scmp('s_cmp_lg_u32', sJ, 16), branch('s_cbranch_scc1', 'L_ed'), branch('s_branch', 'L_edd')])
    g_tb2n = linear(br('s_branch', 'L_merge'))
    end = [label('L_end'), raw('s_endpgm', 'br')]
    endp = [raw('s_endpgm', 'br')]

    stop = OPT['stop']
    if stop == 'proj':
        prog = init + proj + linear([wait(vm=0)]) + end
        return prog, [('all', prog)]
    prog = (init + proj + pre0 + first['g0'][0] + g_after_first_g0 +
            sum(first['g1'], []) + g_after_first_g1 +
            ON + g_on + EN + g_en + OdN + sum(TB1, []) + g_tb1 + TB2 + g_tb2 +
            TB2n + g_tb2n +
            EdN + sum(TA1, []) + TA2 + g_ta2 +
            OD + g_od + ED + g_ed +
            EdD + FIN + mpre + sum(mrg['lo'], []) + sum(mrg['hi'], []) + K3 + endp +
            sum(FB, []) + end)
    paths = []
    fbp = FB[0] + FB[2] + FB[0][148:] + FB[1] + FB[2]
    for p in range(8):
        for w in range(4):
            for fb in (False, True):
                P = init + proj + pre0
                if w < 2:
                    P = P + first['g0'][0] + g_after_first_g0
                    for j in range(1, 17):
                        if j & 1:
                            P = P + OD + g_od
                        else:
                            P = P + (EdD if (j == 16 and p == 7 and w == 0) else ED + g_ed)
                    P = P + FIN
                else:
                    f = first['g1']
                    P = P + f[0] + f[1] + (f[2] if (p == 0 and w == 2) else []) + f[3] + g_after_first_g1
                    last = 2 * p if w == 2 else 2 * p + 1
                    for j in range(1, last + 1):
                        if j == last:
                            P = P + (EdN if w == 2 else OdN)
                        else:
                            P = P + (ON + g_on if j & 1 else EN + g_en)
                    T = TA1 if w == 2 else TB1
                    P = P + T[0] + T[1] + ((T[2] + fbp) if fb else []) + T[3]
                    j = last + 2
                    if w == 2:
                        P = P + TA2 + g_ta2
                    elif j == 17:
                        P = P + g_tb1 + TB2n + g_tb2n
                    else:
                        P = P + g_tb1 + TB2 + g_tb2
                    for j in range(last + 3, 17):
                        if j & 1:
                            P = P + OD + g_od
                        else:
                            P = P + (EdD if (j == 16 and w == 3) else ED + g_ed)
                    if not (w == 3 and p == 7):
                        P = P + FIN
                m = mrg['lo' if w < 2 else 'hi']
                P = P + mpre + m[0] + ((m[1][:3] + fbp + m[1][3:]) if fb else m[2]) + K3
                paths.append((f'p{p}w{w}fb{int(fb)}', P))
    return prog, paths


HEADER = open(os.path.join(os.path.dirname(os.path.abspath(__file__)), 'header.txt')).read()


def emit(path):
    prog, paths = build()
    nerr = 0
    seen = set()
    for name, P in paths:
        nb = sum(1 for i in P if i.k == 'bar')
        for e in check_path(P, name) + check_path(P, name, fast=False):
            key = e.split(': ', 1)[1]
            if key not in seen:
                seen.add(key)
                nerr += 1
                if nerr < 40:
                    print('CHECK', e)
        seen.add(('nb', nb))
    print('; barrier counts:', sorted(x[1] for x in seen if isinstance(x, tuple)), 'errors', nerr,
          'instrs', len(prog))
    k = NAME + '_kernel'
    s = HEADER + f'''; @launch grid=(256,1,1) block=(256,1,1) lds=163840
.amdgcn_target "amdgcn-amd-amdhsa--gfx950"
.text
.globl {k}
.p2align 8
.type {k},@function
{k}:
''' + text(prog) + f'''.section .rodata,"a"
.p2align 6
.amdhsa_kernel {k}
  .amdhsa_next_free_vgpr 512
  .amdhsa_next_free_sgpr 102
  .amdhsa_accum_offset 256
  .amdhsa_group_segment_fixed_size 0
  .amdhsa_kernarg_size 96
  .amdhsa_user_sgpr_count 2
  .amdhsa_user_sgpr_kernarg_segment_ptr 1
  .amdhsa_system_sgpr_workgroup_id_x 1
.end_amdhsa_kernel
'''
    open(path, 'w').write(s)
    return nerr


if __name__ == '__main__':
    out = sys.argv[1]
    for a in sys.argv[2:]:
        k, _, v = a.partition('=')
        OPT[k] = v if v else True
    sys.exit(1 if emit(out) else 0)
```

```python
import re

VEC_COST = {'valu': 1, 'trans': 2, 'ds': 1, 'dma': 2, 'vld': 2, 'vst': 3, 'dsw': 4, 'atom': 2, 'perm': 1}
SCALAR = ('salu', 'wait', 'nop')
VMEM = ('dma', 'vld', 'vst', 'atom')
DSK = ('ds', 'dsw')


def R(kind, a, n=1):
    return [f'{kind}{i}' for i in range(a, a + n)]


def rtxt(kind, a, n=1):
    return f'{kind}{a}' if n == 1 else f'{kind}[{a}:{a + n - 1}]'


class Reg:
    __slots__ = ('k', 'a', 'n')

    def __init__(self, k, a, n=1):
        self.k, self.a, self.n = k, a, n

    def __str__(self):
        return rtxt(self.k, self.a, self.n)

    def regs(self):
        return R(self.k, self.a, self.n)

    def __getitem__(self, i):
        if isinstance(i, slice):
            s = i.start or 0
            e = self.n if i.stop is None else i.stop
            assert 0 <= s < e <= self.n
            return Reg(self.k, self.a + s, e - s)
        assert 0 <= i < self.n, (self, i)
        return Reg(self.k, self.a + i, 1)


def V(a, n=1): return Reg('v', a, n)
def A(a, n=1): return Reg('a', a, n)
def S(a, n=1): return Reg('s', a, n)


def regs_of(x):
    if isinstance(x, Reg):
        return x.regs()
    if isinstance(x, str):
        if x in ('m0', 'vcc', 'scc', 'exec'):
            return [x]
        return []
    return []


class I:
    __slots__ = ('t', 'k', 'rd', 'wr', 'rel', 'dl', 'bb', 'idx', 'tag', 'srcC', 'passes', 'vm', 'lg', 'pos', 'preds',
                 'succs', 'done', 'cost', 'lat', 'slot', 'gp', 'bi')

    def __init__(self, t, k, rd=(), wr=(), rel=None, dl=None, bb=False, tag=None, slot=None):
        self.t, self.k = t, k
        self.rd, self.wr = list(rd), list(wr)
        self.rel, self.dl, self.bb, self.tag, self.slot = rel, dl, bb, tag, slot
        self.srcC = ()
        self.passes = 0
        self.vm = None
        self.lg = None
        self.cost = VEC_COST.get(k, 0)
        self.lat = None
        self.gp = None

    def __repr__(self):
        return self.t


def mfma(D, Aop, Bop, C):
    i = I(f'v_mfma_f32_16x16x32_bf16 {D}, {Aop}, {Bop}, {C}', 'mfma',
          rd=Aop.regs() + Bop.regs() + regs_of(C), wr=D.regs(), bb=True)
    i.srcC = tuple(regs_of(C))
    i.passes = 4
    return i


def mfma32(D, Aop, Bop, C):
    i = I(f'v_mfma_f32_32x32x16_bf16 {D}, {Aop}, {Bop}, {C}', 'mfma',
          rd=Aop.regs() + Bop.regs() + regs_of(C), wr=D.regs(), bb=True)
    i.srcC = tuple(regs_of(C))
    i.passes = 8
    return i


TRANS = ('v_exp_f32', 'v_rcp_f32', 'v_sqrt_f32', 'v_rsq_f32', 'v_log_f32')


def valu(op, D, *src, extra_rd=(), extra_wr=(), mod='', **kw):
    k = 'trans' if op in TRANS else 'valu'
    rd = []
    for s in src:
        rd += regs_of(s)
    if op in ('v_fmac_f32',):
        rd += regs_of(D)
    txt = f'{op} {D}, ' + ', '.join(str(s) for s in src) + (' ' + mod if mod else '')
    i = I(txt, k, rd=rd + list(extra_rd) + ['exec'], wr=regs_of(D) + list(extra_wr), **kw)
    return i


def vcmp(op, dst, a, b, **kw):
    return I(f'{op} {dst}, {a}, {b}', 'valu', rd=regs_of(a) + regs_of(b) + ['exec'], wr=regs_of(dst), **kw)


def cndmask(D, f, t, mask, **kw):
    return I(f'v_cndmask_b32 {D}, {f}, {t}, {mask}', 'valu', rd=regs_of(f) + regs_of(t) + regs_of(mask) + ['exec'],
             wr=D.regs(), **kw)


def permswap(op, a, b, **kw):
    return I(f'{op} {a}, {b}', 'perm', rd=a.regs() + b.regs() + ['exec'], wr=a.regs() + b.regs(), **kw)


def readfirst(sd, v):
    return I(f'v_readfirstlane_b32 {sd}, {v}', 'valu', rd=v.regs() + ['exec'], wr=sd.regs())


SCC_W = ('s_add_u32', 's_addc_u32', 's_sub_u32', 's_subb_u32', 's_and_b32', 's_or_b32', 's_xor_b32', 's_lshl_b32',
         's_lshr_b32', 's_and_b64', 's_or_b64', 's_min_u32', 's_max_u32', 's_add_i32', 's_sub_i32', 's_bfe_u32',
         's_andn2_b32', 's_not_b32')
SCC_R = ('s_addc_u32', 's_subb_u32', 's_cselect_b32', 's_cselect_b64')


def salu(op, D, *src, **kw):
    rd = []
    for s in src:
        rd += regs_of(s)
    wr = regs_of(D)
    if op in SCC_W:
        wr = wr + ['scc']
    if op in SCC_R:
        rd = rd + ['scc']
    return I(f'{op} {D}, ' + ', '.join(str(s) for s in src), 'salu', rd=rd, wr=wr, **kw)


def scmp(op, a, b, **kw):
    return I(f'{op} {a}, {b}', 'salu', rd=regs_of(a) + regs_of(b), wr=['scc'], **kw)


def ds_read(D, addr, off=0, op=None, tag=None, **kw):
    if op is None:
        op = {1: 'ds_read_b32', 2: 'ds_read_b64', 4: 'ds_read_b128'}[D.n]
    assert 0 <= off < 65536, off
    return I(f'{op} {D}, {addr}' + (f' offset:{off}' if off else ''), 'ds', rd=addr.regs() + ['LDSF', 'exec'],
             wr=D.regs(), tag=tag, **kw)


def ds_tr(D, addr, off=0, **kw):
    return ds_read(D, addr, off, op='ds_read_b64_tr_b16', **kw)


def ds_write(addr, Sx, off=0, tag=None, **kw):
    op = {1: 'ds_write_b32', 2: 'ds_write_b64', 4: 'ds_write_b128'}[Sx.n]
    assert 0 <= off < 65536, off
    return I(f'{op} {addr}, {Sx}' + (f' offset:{off}' if off else ''), 'dsw',
             rd=addr.regs() + Sx.regs() + ['LDSF', 'exec'], wr=[], tag=tag, **kw)


def swizzle(D, Sx, pat):
    return I(f'ds_swizzle_b32 {D}, {Sx} offset:{pat:#x}', 'ds', rd=Sx.regs() + ['exec'], wr=D.regs())


def _w(n): return {1: 'dword', 2: 'dwordx2', 4: 'dwordx4'}[n]


def dma(vaddr, srd, soff, off=0, flags='', tag=None, **kw):
    assert 0 <= off < 4096
    return I(f'buffer_load_dwordx4 {vaddr}, {srd}, {soff} offen' + (f' offset:{off}' if off else '') +
             (' ' + flags if flags else '') + ' lds', 'dma',
             rd=vaddr.regs() + srd.regs() + regs_of(soff) + ['m0', 'LDSF', 'VM', 'exec'], wr=['VM'], tag=tag, **kw)


def vload(D, vaddr, srd, soff, off=0, flags='', **kw):
    assert 0 <= off < 4096
    return I(f'buffer_load_{_w(D.n)} {D}, {vaddr}, {srd}, {soff} offen' + (f' offset:{off}' if off else '') +
             (' ' + flags if flags else ''), 'vld',
             rd=vaddr.regs() + srd.regs() + regs_of(soff) + ['VM', 'exec'], wr=D.regs() + ['VM'], **kw)


def vstore(Sx, vaddr, srd, soff, off=0, flags='', **kw):
    assert 0 <= off < 4096
    return I(f'buffer_store_{_w(Sx.n)} {Sx}, {vaddr}, {srd}, {soff} offen' + (f' offset:{off}' if off else '') +
             (' ' + flags if flags else ''), 'vst',
             rd=Sx.regs() + vaddr.regs() + srd.regs() + regs_of(soff) + ['VM', 'exec'], wr=['VM'], **kw)


def atomic_add(Sx, vaddr, srd, soff, off=0, flags='sc1', **kw):
    return I(f'buffer_atomic_add {Sx}, {vaddr}, {srd}, {soff} offen' + (f' offset:{off}' if off else '') +
             (' ' + flags if flags else ''), 'atom',
             rd=Sx.regs() + vaddr.regs() + srd.regs() + regs_of(soff) + ['VM', 'exec'], wr=['VM'], **kw)


def wait(vm=None, lg=None, bb=True, fence=False):
    parts = []
    if vm is not None:
        assert 0 <= vm <= 63
        parts.append(f'vmcnt({vm})')
    if lg is not None:
        assert 0 <= lg <= 15
        parts.append(f'lgkmcnt({lg})')
    rd, wr = [], []
    if vm is not None:
        rd.append('VM'); wr.append('VM')
    if fence:
        wr.append('LDSF')
    i = I('s_waitcnt ' + ' '.join(parts), 'wait', rd=rd, wr=wr, bb=bb)
    i.vm, i.lg = vm, lg
    return i


def barrier():
    return I('s_barrier', 'bar', wr=['LDSF'], bb=True)


def nop(n):
    i = I(f's_nop {n}', 'nop')
    i.lat = n + 1
    return i


def label(name):
    return I(f'{name}:', 'lab', bb=True)


def branch(op, target):
    rd = {'s_cbranch_scc0': ['scc'], 's_cbranch_scc1': ['scc'], 's_cbranch_vccz': ['vcc'], 's_cbranch_vccnz': ['vcc'],
          's_branch': [], 's_cbranch_execz': ['exec']}[op]
    return I(f'{op} {target}', 'br', rd=rd, bb=True)


def note(slot, content):
    i = I('', 'note', bb=True)
    i.tag = (slot, content)
    return i


def wait_for(L, needed, lg=None, fence=False):
    ids = {id(x) for x in needed}
    n = 0
    for i in reversed(L):
        if id(i) in ids:
            break
        if i.k in VMEM and i.tag != 'slow':
            n += 1
    else:
        raise AssertionError('needed instruction not in list')
    return wait(vm=n, lg=lg, fence=fence)


def glue(items, **kw):
    rd, wr = [], []
    for i in items:
        rd += [r for r in i.rd if r not in wr and r != 'scc']
        wr += [r for r in i.wr if r != 'scc']
    g = I('\n  '.join(i.t for i in items), 'salu', rd=rd, wr=wr, **kw)
    g.passes = len(items)
    return g


def raw(t, k='salu', rd=(), wr=(), **kw):
    return I(t, k, rd=rd, wr=wr, **kw)


def is_valu(i): return i.k in ('valu', 'trans', 'perm')


def hazard(p, c, r, typ):
    if r in ('VM', 'LDSF', 'scc', 'exec'):
        return 0
    if typ == 'RAW':
        if p.k == 'mfma':
            n4 = p.passes == 4
            if c.k == 'mfma':
                if r in c.srcC:
                    if tuple(p.wr) == tuple(c.srcC) and p.passes == c.passes:
                        ab = [x for x in c.rd if x not in c.srcC]
                        if r in ab:
                            return 8 if n4 else 12
                        return 0
                    return 6 if n4 else 10
                return 8 if n4 else 12
            return 8 if n4 else 12
        if is_valu(p):
            if r[0] in 'va' and r != 'vcc':
                if c.k == 'mfma':
                    return 2
                if c.k == 'perm':
                    return 2
                if c.t.startswith('v_readfirstlane') or c.t.startswith('v_readlane'):
                    return 1
                if '_dpp' in c.t:
                    return 2
                if p.k == 'trans' and is_valu(c) and c.k != 'trans':
                    return 1
                if p.k == 'trans' and c.k in VMEM + DSK:
                    return 1
                return 0
            if c.k in VMEM:
                return 5
            if is_valu(c):
                return 2
            if c.k in ('salu', 'br'):
                return 4
            return 0
        if p.k == 'salu' and r == 'm0' and c.k == 'dma':
            return 1
        return 0
    if typ == 'WAR':
        if p.k == 'mfma' and r in p.srcC and is_valu(c):
            return 3 if p.passes == 4 else 7
        if p.k == 'vst' and len([x for x in p.rd if x[0] in 'va']) >= 5 and r[0] in 'va':
            return 2
        return 0
    if typ == 'WAW':
        if p.k == 'mfma':
            if c.k == 'mfma':
                return 0 if p.passes == c.passes else (8 if p.passes == 4 else 12)
            return 8 if p.passes == 4 else 12
        return 0
    return 0


def build_deps(L):
    lastw = {}
    readers = {}
    for n, i in enumerate(L):
        i.idx = n
        i.preds = {}
        i.succs = {}
        i.done = False
    for i in L:
        assert i.bb or 'scc' not in i.rd, i
        for r in i.rd:
            if r == 'scc':
                continue
            p = lastw.get(r)
            if p is not None:
                d = hazard(p, i, r, 'RAW')
                _edge(p, i, d, 'RAW', r)
        for r in i.wr:
            if r == 'scc':
                continue
            p = lastw.get(r)
            if p is not None:
                _edge(p, i, hazard(p, i, r, 'WAW'), 'WAW', r)
            for q in readers.get(r, ()):
                if q is not i:
                    _edge(q, i, hazard(q, i, r, 'WAR'), 'WAR', r)
        for r in i.rd:
            readers.setdefault(r, []).append(i)
        for r in i.wr:
            lastw[r] = i
            readers[r] = []


def _edge(p, c, d, typ, r):
    raw_data = typ == 'RAW' and r not in ('VM', 'LDSF', 'scc', 'exec')
    o = c.preds.get(p.idx)
    if o is None:
        c.preds[p.idx] = [p, d, raw_data]
        p.succs[c.idx] = c
    else:
        o[1] = max(o[1], d)
        o[2] = o[2] or raw_data


DS_LAT = 9


def schedule(L, ds_lat=DS_LAT, verbose=None, budget=2):
    build_deps(L)
    bbs = [i for i in L if i.bb]
    for n, b in enumerate(bbs):
        b.bi = n
    g = 0
    for b in bbs:
        b.pos = g
        if b.k == 'mfma':
            g += 1
    ng = g
    BIG = ng + 1000
    for i in reversed(L):
        if i.bb:
            continue
        d = BIG if i.dl is None else i.dl
        for s in i.succs.values():
            e = s.preds[i.idx]
            if s.bb:
                m = s.pos - 1
                if e[2] and i.k == 'ds':
                    m -= ds_lat
                elif e[1] > 0:
                    m -= (e[1] + 1) // 2
            else:
                m = s.dl
                if e[2] and i.k == 'ds':
                    m -= ds_lat
                elif e[1] > 0 or True:
                    m -= 0.25
            d = min(d, m)
        i.dl = d
    out = []
    pend = []
    fill = [i for i in L if not i.bb]
    stats = {'forced': 0, 'nops': 0, 'waits_inline': 0, 'over': 0}

    def dist_ok(i):
        need = 0
        for p, d, _ in i.preds.values():
            if not p.done:
                return None
            if d:
                have = states_between(p)
                need = max(need, d - have)
        return need

    def states_between(p):
        return cur[0] - p.slot - 1

    cur = [0]

    def emit(i):
        i.done = True
        i.slot = cur[0]
        if i.k in ('lab', 'note') or i.tag == 'slow':
            i.slot = cur[0] - 1
        else:
            cur[0] += i.lat if i.k == 'nop' else 1
            i.slot = cur[0] - 1
        out.append(i)
        if i.k in DSK:
            pend.append(i)
        if i.k == 'wait' and i.lg is not None and i.tag != 'slow':
            del pend[:max(0, len(pend) - i.lg)]

    def lg_need(i):
        k = -1
        s = set(i.rd) | set(i.wr)
        for n, p in enumerate(pend):
            if p.k == 'ds' and s.intersection(p.wr):
                k = n
        return k

    def emit_checked(i):
        k = lg_need(i)
        if k >= 0:
            assert i.tag != 'slow'
            w = wait(lg=min(15, len(pend) - 1 - k), bb=False)
            w.preds = {}
            emit(w)
            stats['waits_inline'] += 1
        need = dist_ok(i)
        assert need is not None, i
        if need > 0:
            n = nop(need - 1)
            n.preds = {}
            if i.tag == 'slow':
                n.tag = 'slow'
            emit(n)
            stats['nops'] += 1
        emit(i)

    def force(i):
        for p, d, _ in sorted(i.preds.values(), key=lambda e: e[0].idx):
            if not p.done:
                assert not p.bb, (i, p)
                force(p)
                fill.remove(p)
                emit_checked(p)
                stats['forced'] += 1

    def ready(i, gap):
        if i.rel is not None and gap < i.rel:
            return False
        need = dist_ok(i)
        if need is None or need > 0:
            return False
        if lg_need(i) >= 0:
            return False
        return True

    for n, b in enumerate(bbs):
        force(b)
        emit_checked(b)
        if b.k != 'mfma':
            continue
        gap = b.pos
        nxt = None
        for x in bbs[n + 1:n + 4]:
            if x.k not in ('lab', 'note'):
                nxt = x
                break
        used_scalar = False
        if nxt is not None and nxt.k == 'mfma':
            k = lg_need(nxt)
            if k >= 0:
                while k + 1 < len(pend) and pend[k + 1].gp is not None and pend[k + 1].gp <= gap - ds_lat + 2:
                    k += 1
                w = wait(lg=min(15, len(pend) - 1 - k), bb=False)
                w.preds = {}
                emit(w)
                used_scalar = True
        scalar_next_bb = nxt is not None and nxt.k in ('wait', 'bar', 'br')
        if not used_scalar and not scalar_next_bb:
            c = [i for i in fill if i.k in SCALAR and ready(i, gap)]
            if c:
                i = min(c, key=lambda x: (x.dl, x.idx))
                fill.remove(i)
                emit(i)
        if scalar_next_bb:
            pass
        bud = budget = 2 if b.passes == 4 else 6
        chosen_valu = False
        while bud > 0:
            c = [i for i in fill if i.k not in SCALAR and ready(i, gap) and (i.cost <= bud or (i.cost > budget and bud == budget))
                 and not (chosen_valu and i.k not in ('valu', 'trans', 'perm'))]
            if len([x for x in pend if x.gp is None or x.gp > gap - 8]) >= 12:
                c = [i for i in c if i.k not in DSK]
            if not c:
                break
            i = min(c, key=lambda x: (x.dl, x.idx))
            if i.k == 'valu' and bud == 2:
                m = [x for x in c if x.k == 'ds' and x.dl <= i.dl + 6]
                if m:
                    i = min(m, key=lambda x: (x.dl, x.idx))
            fill.remove(i)
            if i.k in DSK:
                i.gp = gap
            emit(i)
            bud -= i.cost
            if is_valu(i):
                chosen_valu = True
        while True:
            c = [i for i in fill if i.dl <= gap and ready(i, gap) and i.k in SCALAR]
            if not c:
                break
            i = min(c, key=lambda x: (x.dl, x.idx))
            fill.remove(i)
            emit(i)
            stats['over'] += 1
    fill.sort(key=lambda x: x.idx)
    while fill:
        pick = fill[0]
        for i in fill[:12]:
            if dist_ok(i) == 0 and lg_need(i) < 0:
                pick = i
                break
        fill.remove(pick)
        emit_checked(pick)
        stats['tail'] = stats.get('tail', 0) + 1
    exp = {}
    lw = None
    for i in L:
        if 'scc' in i.rd:
            exp[id(i)] = lw
        if 'scc' in i.wr:
            lw = i
    lw = None
    for i in out:
        if 'scc' in i.rd:
            assert exp[id(i)] is lw or exp[id(i)] is None, ('scc clobbered', i, lw)
        if 'scc' in i.wr or (i.k == 'salu' and i.passes > 1):
            lw = i
    if verbose:
        print(f'; sched {verbose}: {len(out)} instrs, {ng} mfma, {stats}, est cycles {estimate(out)}')
    return out


def linear(L):
    for i in L:
        i.bb = True
    return schedule(L)


def estimate(L):
    t = 0
    mf_free = 0
    vec_free = 0
    last_valu_end = -100
    for i in L:
        if i.k in ('lab', 'note') or i.tag == 'slow':
            continue
        if i.k == 'mfma':
            t = max(t, mf_free, vec_free)
            mf_free = t + 4 * i.passes
            vec_free = t + 8
            t += 4
        elif i.k in ('salu', 'wait', 'bar', 'br'):
            t += 4 * max(1, i.passes)
        elif i.k == 'nop':
            t += 4 * i.lat
        elif is_valu(i):
            t = max(t, vec_free)
            d = 8 if i.k == 'trans' else 4
            t += d
            vec_free = t
            last_valu_end = t
        else:
            t = max(t, vec_free, last_valu_end + 8)
            t += 4 * i.cost
            vec_free = t
    return max(t, mf_free)


def check_path(L, name='', fast=True):
    errs = []
    lastw = {}
    lastr = {}
    t = 0
    pend_ds = []
    pend_vm = []
    published = {}
    landed = {}
    read_since_bar = set()
    for i in L:
        if i.k == 'lab' or (i.tag == 'slow' and fast):
            continue
        if i.k == 'note':
            landed.setdefault(i.tag[0], set()).add(i.tag[1])
            if published.get(i.tag[0]) != i.tag[1]:
                published[i.tag[0]] = None
            if i.tag[0] in read_since_bar:
                errs.append(f'{name}: foreign DMA into slot {i.tag} noted after a read in the same interval')
            continue
        for r in i.rd:
            p = lastw.get(r)
            if p:
                d = hazard(p[0], i, r, 'RAW')
                if t - p[1] - 1 < d:
                    errs.append(f'{name}: RAW {r}: "{p[0]}" -> "{i}" has {t - p[1] - 1} < {d}')
        for r in i.wr:
            p = lastw.get(r)
            if p:
                d = hazard(p[0], i, r, 'WAW')
                if t - p[1] - 1 < d:
                    errs.append(f'{name}: WAW {r}: "{p[0]}" -> "{i}" has {t - p[1] - 1} < {d}')
            for q, tq in lastr.get(r, ()):
                d = hazard(q, i, r, 'WAR')
                if t - tq - 1 < d and q is not i:
                    errs.append(f'{name}: WAR {r}: "{q}" -> "{i}" has {t - tq - 1} < {d}')
        if i.k == 'mfma' and i.srcC and tuple(i.srcC) == tuple(i.wr):
            for r in i.srcC:
                p = lastw.get(r)
                if p is None or not (p[0].k == 'mfma' or p[0].tag == 'ci'):
                    errs.append(f'{name}: accumulator {r} of "{i}" last written by "{p and p[0]}"')
        s = (set(i.rd) | set(i.wr)) - {'VM', 'LDSF', 'exec'}
        for p in pend_ds:
            if p.k == 'ds' and s.intersection(p.wr):
                errs.append(f'{name}: LDS read not waited: "{p}" -> "{i}"')
        for p in pend_vm:
            if p.k == 'vld' and s.intersection(set(p.wr) - {'VM'}) and not (p.tag == 'touch' and i.tag == 'touch'):
                errs.append(f'{name}: load not waited: "{p}" -> "{i}"')
        if i.k == 'wait':
            if i.lg is not None:
                del pend_ds[:max(0, len(pend_ds) - i.lg)]
            if i.vm is not None:
                k = max(0, len(pend_vm) - i.vm)
                for p in pend_vm[:k]:
                    if p.k == 'dma' and p.tag:
                        landed.setdefault(p.tag[0], set()).add(p.tag[1])
                del pend_vm[:k]
        if i.k in DSK:
            pend_ds.append(i)
            if len(pend_ds) > 64:
                errs.append(f'{name}: too many LDS ops outstanding')
        if i.k in VMEM:
            pend_vm.append(i)
            if len(pend_vm) > 63:
                errs.append(f'{name}: more than 63 vmem ops outstanding at "{i}"')
        if i.k == 'dma' and isinstance(i.tag, tuple):
            if i.tag[0] in read_since_bar:
                errs.append(f'{name}: DMA into slot {i.tag} that was read since the last barrier')
            if published.get(i.tag[0]) != i.tag[1]:
                published[i.tag[0]] = None
        if i.k == 'ds' and isinstance(i.tag, tuple):
            read_since_bar.add(i.tag[0])
            if i.tag[1] is not None and published.get(i.tag[0]) != i.tag[1]:
                errs.append(f'{name}: read of {i.tag} but slot holds {published.get(i.tag[0])}: "{i}"')
        if i.k == 'bar':
            for p in pend_ds:
                if p.tag:
                    errs.append(f'{name}: LDS op outstanding at barrier: "{p}"')
            still = {p.tag for p in pend_vm if p.k == 'dma' and p.tag}
            for sl, cs in list(landed.items()):
                for c in cs:
                    if (sl, c) not in still:
                        published[sl] = c
                landed[sl] = {c for c in cs if (sl, c) in still}
            read_since_bar = set()
        tt = t + (i.lat - 1 if i.k == 'nop' else 0)
        for r in i.rd:
            lastr.setdefault(r, []).append((i, tt))
            if len(lastr[r]) > 6:
                del lastr[r][0]
        for r in i.wr:
            lastw[r] = (i, tt)
            lastr[r] = []
        t = tt + 1
    return errs


def text(L):
    return '\n'.join(('' if i.k == 'lab' else '  ') + i.t for i in L if i.k != 'note') + '\n'
```

```python
import sys
import os
sys.path.insert(0, os.path.dirname(os.path.abspath(__file__)))
from core import *

NAME = 'parallel_sum__compressed_kv_cla__dense_activation_relu__prompt'
OPT = dict(stop=None, stamps=False, force_fb=False, kvstep=5, attstep=5, qhstep=5, touch=1, code=1, lateinit=1, tpos=84, early=1, dchk=4, fold=0, pbf=1, k3x='')

XN = 0x0000000
KV = 0x0400000
CH = 0x2400000
PART = 0x3C00000
CNT = 0x5400000
TS = 0x5500000
WS_BYTES = 0x10000000
OOB = 0x40000000
K1 = 1024

sWG = S(2)
sX, sC, sWKV, sWQ, sW1, sWR, sWS, sOUT, sDBG = (S(4 + 4 * i, 4) for i in range(9))
sWO, sW2 = sC, sWKV
sW, sH, sP = S(40), S(41), S(42)
sT0, sT1, sSpin = S(43), S(44), S(45)
sB = [S(46 + i) for i in range(10)]
sRot = [S(56 + i) for i in range(4)]
sMask = [S(60 + 2 * i, 2) for i in range(4)]
sArg = 68
sJ, sRole, sNt, sRT2, sStamp = S(92), S(93), S(94), S(95), S(96)
sTm = S(98, 2)
_rot = [0]


def rot():
    _rot[0] = (_rot[0] + 1) % len(sRot)
    return sRot[_rot[0]]


def ptr(i): return S(sArg + 2 * i), S(sArg + 2 * i + 1)


vTid, vL16, vC0, vC1, vW, vW1 = V(0), V(1), V(2), V(3), V(4), V(5)
vX = [V(6), V(7)]
vY = [V(8 + i) for i in range(4)]
vWR, vYR, vSig, vOne = V(12), V(13), V(14), V(15)
vKV, vSigW = V(252), V(253)

KV_W, KV_C = 0, 64 * K1
QH_S = (128 * K1, 16 * K1, 40 * K1)
QH_R = 128 * K1
QX = 128 * K1
MX = 64 * K1 + 48 * K1

SCALE = 0x3E029434
import struct
_c = struct.unpack('<I', struct.pack('<f', 1.4426950408889634 / 128 ** 0.5))[0]
SCALE = _c
INVSCALE = struct.unpack('<I', struct.pack('<f', 128 ** 0.5 / 1.4426950408889634))[0]
NEGBIG = 0xF149F2CA
LTHR = 0x4E800000
LLOW = 0x30800000


def srd(L, d, p, nbytes):
    L += [salu('s_mov_b32', d[0], p[0]), salu('s_and_b32', d[1], p[1], '0xffff'),
          salu('s_mov_b32', d[2], hex(nbytes)), salu('s_mov_b32', d[3], '0x20000')]


def stamp(L, n=None, t=None, real=False):
    if not OPT['stamps']:
        return
    t = t or V(29)
    txt = '\n  '.join([f's_mem{"real" if real else ""}time {sTm}', 's_waitcnt lgkmcnt(0)', f'v_mov_b32 {t}, {sTm[0]}',
                       's_mov_b64 exec, 1', f'buffer_store_dword {t}, {vL16}, {sWS}, {sStamp} offen',
                       's_mov_b64 exec, -1', f's_add_u32 {sStamp}, {sStamp}, 4'])
    L.append(raw(txt, 'vst', rd=vL16.regs() + ['VM'], wr=t.regs() + ['VM'], bb=True))


def poll_issue(L, srdx, soff, t, z, **kw):
    L.append(valu('v_mov_b32', z, 0))
    L.append(vload(t, z, srdx, soff, flags='sc1', **kw))
    return L[-1]


def poll(L, name, srdx, soff, target, t, z, sampled=False):
    lab = label(f'L_poll_{name}')
    lab.rd, lab.wr = ['VM', 'LDSF'], ['VM']
    n0 = len(L)
    if sampled:
        L += [readfirst(sT0, t), scmp('s_cmp_ge_u32', sT0, target), branch('s_cbranch_scc1', f'L_pd_{name}')]
        L[n0].rd += ['VM', 'LDSF']
        L[n0].wr += ['VM']
    L += [valu('v_mov_b32', z, 0), salu('s_mov_b32', sSpin, hex(400000)), lab,
          vload(t, z, srdx, soff, flags='sc1'), wait(vm=0), readfirst(sT0, t),
          scmp('s_cmp_ge_u32', sT0, target), branch('s_cbranch_scc1', f'L_pd_{name}'),
          raw('s_sleep 2'), salu('s_sub_u32', sSpin, sSpin, 1), scmp('s_cmp_lg_u32', sSpin, 0),
          branch('s_cbranch_scc1', f'L_poll_{name}'), label(f'L_pd_{name}')]
    for i in L[n0:]:
        i.bb = True
    if sampled:
        for i in L[n0 + 3:-1]:
            i.tag = 'slow'


def piece(L, vaddr, srdx, sbase, goff, slds, loff, tag=None, flags='', dl=None, rel=None):
    t = rot()
    L.append(salu('s_add_u32', 'm0', slds, hex(loff), rel=None if rel is None else rel - 2))
    L.append(salu('s_add_u32', t, sbase, hex(goff), rel=None if rel is None else rel - 2))
    d = dma(vaddr, srdx, t, tag=tag, flags=flags, dl=dl, rel=rel)
    L.append(d)
    return d


def gen_init():
    L = []
    if OPT['stamps']:
        L += [raw('s_memrealtime s[60:61]', wr=['s60', 's61']), raw('s_memtime s[62:63]', wr=['s62', 's63'])]
    L += [scmp('s_cmp_ge_u32', sWG, 256), branch('s_cbranch_scc1', 'L_end')]
    L += [raw(f's_load_dwordx16 s[{sArg}:{sArg + 15}], s[0:1], 0', wr=R('s', sArg, 16)),
          raw(f's_load_dwordx8 s[{sArg + 16}:{sArg + 23}], s[0:1], 64', wr=R('s', sArg + 16, 8))]
    lane, t0, t1, t2, t3 = V(16), V(17), V(18), V(19), V(20)
    wr_, wc_ = sB[8], sB[9]
    L += [valu('v_lshrrev_b32', t0, 6, vTid), valu('v_and_b32', lane, 63, vTid), readfirst(sW, t0)]
    if int(OPT['code']):
        sCode = S(64, 4)
        L += [raw(f's_getpc_b64 {sCode[0:2]}', wr=sCode[0:2].regs()), label('L_pc'),
              salu('s_and_b32', sCode[1], sCode[1], '0xffff'), salu('s_mov_b32', sCode[2], 'L_end-L_pc'),
              salu('s_mov_b32', sCode[3], '0x20000'), valu('v_lshlrev_b32', t0, 7, lane),
              salu('s_lshr_b32', sT0, sWG, 3), salu('s_lshl_b32', sT0, sT0, 2), salu('s_add_u32', sT0, sT0, sW),
              salu('s_lshl_b32', sT0, sT0, 13), vload(A(250), t0, sCode, sT0)]
    L += [valu('v_lshlrev_b32', vL16, 4, lane)]
    L += [salu('s_and_b32', sT0, sWG, 7), salu('s_lshl_b32', sT0, sT0, 2), salu('s_lshr_b32', sT1, sWG, 3),
          salu('s_and_b32', sT1, sT1, 3), salu('s_add_u32', sH, sT0, sT1), salu('s_lshr_b32', sP, sWG, 5),
          salu('s_lshr_b32', wr_, sW, 1), salu('s_and_b32', wc_, sW, 1)]
    xa = V(21)
    row = V(22)
    L += [salu('s_lshl_b32', sT0, sWG, 3), salu('s_lshl_b32', sT1, sW, 1), salu('s_add_u32', sT0, sT0, sT1),
          valu('v_lshrrev_b32', row, 5, lane), valu('v_add_u32', row, sT0, row),
          valu('v_mul_u32_u24', xa, 1280, row), valu('v_and_b32', t0, 31, lane), valu('v_lshl_add_u32', xa, t0, 4, xa)]
    L += [valu('v_lshrrev_b32', t0, 3, lane), valu('v_and_b32', t1, 7, lane), valu('v_lshrrev_b32', t2, 4, lane),
          valu('v_xor_b32', t3, t1, t2), valu('v_lshlrev_b32', t3, 4, t3), valu('v_lshl_add_u32', vC0, t0, 10, t3),
          valu('v_xor_b32', vC1, 64, vC0)]
    L += [valu('v_lshlrev_b32', t2, 1, t2), valu('v_xor_b32', t3, t1, t2), valu('v_lshlrev_b32', t3, 4, t3),
          valu('v_and_b32', t1, 3, t0), valu('v_lshrrev_b32', t2, 2, t0), valu('v_lshl_add_u32', t1, t2, 3, t1),
          valu('v_lshl_add_u32', vW, t1, 13, t3),
          valu('v_mul_u32_u24', t1, 3456, t1), valu('v_add_u32', vW1, t1, t3),
          valu('v_mul_u32_u24', t1, 1280, t0), valu('v_add_u32', vWR, t1, t3)]
    cB, wB, lC, lW, kvS = sB[0], sB[1], sB[2], sB[3], sB[4]
    L += [salu('s_lshl_b32', cB, sP, 18), salu('s_lshl_b32', sT0, sW, 16), salu('s_add_u32', cB, cB, sT0),
          salu('s_lshl_b32', wB, sH, 8), salu('s_lshl_b32', sT0, wc_, 7), salu('s_add_u32', wB, wB, sT0),
          salu('s_lshl_b32', lW, sW, 13), salu('s_add_u32', lC, lW, hex(KV_C))]
    tC, tW, tQ, t1w = V(24), V(25), V(26), V(27)
    touches = []
    if int(OPT['touch']):
        L += [salu('s_and_b32', sT0, sH, 3), salu('s_lshl_b32', sT0, sT0, 2), salu('s_add_u32', sT0, sT0, sW),
              salu('s_lshl_b32', sT1, sP, 4), salu('s_add_u32', sT0, sT0, sT1), salu('s_lshl_b32', sT0, sT0, 14),
              valu('v_and_b32', t0, 15, lane), valu('v_lshlrev_b32', t0, 10, t0), valu('v_lshrrev_b32', t1, 4, lane),
              valu('v_lshl_add_u32', t0, t1, 7, t0), valu('v_add_u32', t0, sT0, t0),
              valu('v_mov_b32', t2, hex(OOB)), vcmp('v_cmp_gt_u32', 'vcc', 32, lane), cndmask(tC, t2, t0, 'vcc'),
              valu('v_bfe_u32', t0, lane, 1, 2), valu('v_lshrrev_b32', t1, 3, lane),
              valu('v_lshl_add_u32', t0, t1, 6, t0), valu('v_lshlrev_b32', t0, 13, t0),
              valu('v_and_b32', t1, 1, lane), valu('v_lshl_add_u32', t0, t1, 7, t0),
              salu('s_lshl_b32', sT0, sP, 1), salu('s_add_u32', sT0, sT0, wc_), salu('s_lshl_b32', sT0, sT0, 15),
              salu('s_lshl_b32', sT1, sH, 8), salu('s_add_u32', sT0, sT0, sT1), valu('v_add_u32', t0, sT0, t0),
              vcmp('v_cmp_gt_u32', 'vcc', 16, lane), cndmask(tW, t2, t0, 'vcc')]
    for d, n in ((sX, 2621440), (sC, 2097152), (sWKV, 4194304), (sWQ, 5242880), (sW1, 2211840), (sOUT, 2621440),
                 (sDBG, 256), (sWS, WS_BYTES)):
        L += [salu('s_mov_b32', d[2], hex(n)), salu('s_mov_b32', d[3], '0x20000')]
    L += [wait(lg=0)]

    def base(d, p):
        L.extend([salu('s_mov_b32', d[0], p[0]), salu('s_and_b32', d[1], p[1], '0xffff')])
    base(sX, ptr(0))
    xr = [V(32 + 4 * n, 4) for n in range(3)]
    lnl = [vload(xr[n], xa, sX, 0, off=512 * n) for n in range(3)]
    L += lnl
    base(sC, ptr(1))
    L += [scmp('s_cmp_lt_u32', sW, 2), salu('s_cselect_b32', sWKV[0], ptr(3)[0], ptr(4)[0]),
          salu('s_cselect_b32', sWKV[1], ptr(3)[1], ptr(4)[1]), salu('s_and_b32', sWKV[1], sWKV[1], '0xffff')]
    if int(OPT['touch']):
        L += [vload(A(240), tW, sWKV, 0), vload(A(241), tC, sC, 0)]
        if int(OPT['early']):
            L += [salu('s_mov_b32', sT0, hex(2 * 64 * 8192)), vload(A(242), tW, sWKV, sT0),
                  vload(A(243), tC, sC, 0, off=256)]
    base(sWQ, ptr(2))
    base(sW1, ptr(7))
    base(sOUT, ptr(9))
    base(sDBG, ptr(10))
    base(sWS, ptr(11))
    if OPT['stamps']:
        L += [salu('s_lshl_b32', sStamp, sWG, 2), salu('s_add_u32', sStamp, sStamp, sW),
              salu('s_lshl_b32', sStamp, sStamp, 9), salu('s_add_u32', sStamp, sStamp, hex(TS))]
        for r in (60, 62):
            L.append(raw('\n  '.join([f'v_mov_b32 v29, s{r}', 's_mov_b64 exec, 1',
                                        f'buffer_store_dword v29, {vL16}, {sWS}, {sStamp} offen', 's_mov_b64 exec, -1',
                                        f's_add_u32 {sStamp}, {sStamp}, 4']), 'vst', rd=['VM'], wr=['VM', 'v29']))
    stamp(L, 0)
    if int(OPT['touch']):
        L += [salu('s_mul_i32', sT0, sP, 80), salu('s_mul_i32', sT1, sW, 20), salu('s_add_u32', sT0, sT0, sT1),
              valu('v_lshrrev_b32', t0, 1, lane), valu('v_add_u32', t0, sT0, t0), valu('v_lshlrev_b32', t0, 13, t0),
              valu('v_and_b32', t1, 1, lane), valu('v_lshl_add_u32', t0, t1, 7, t0), salu('s_lshl_b32', sT1, sH, 8),
              valu('v_add_u32', t0, sT1, t0), vcmp('v_cmp_gt_u32', 'vcc', 40, lane), cndmask(tQ, t2, t0, 'vcc'),
              valu('v_add_u32', t0, sT0, lane), valu('v_mul_u32_u24', t0, 3456, t0), salu('s_lshl_b32', sT1, sH, 7),
              valu('v_add_u32', t0, sT1, t0), vcmp('v_cmp_gt_u32', 'vcc', 20, lane), cndmask(t1w, t2, t0, 'vcc')]
        touches = [[salu('s_mov_b32', sT0, hex(2 * 64 * 8192)), vload(A(242), tW, sWKV, sT0)],
                   [vload(A(243), tC, sC, 0, off=256)]]

    def late(LL, s, g):
        if not int(OPT['touch']):
            return
        kw = dict(rel=g, dl=g + 4)
        if s in (0, 2):
            t = rot()
            LL.extend([salu('s_mov_b32', t, hex((4 + s) * 64 * 8192)), vload(A(244 + s), tW, sWKV, t, **kw)])
        if s in (1, 3):
            LL.append(vload(A(244 + s), tC, sC, 0, off=128 * (3 + s), **kw))
        if s == 3:
            LL.append(vload(A(248), tQ, sWQ, 0, **kw))
        if s == 4:
            LL.append(vload(A(249), t1w, sW1, 0, **kw))
    L += [valu('v_and_b32', t0, 15, lane), valu('v_lshrrev_b32', t1, 4, lane), valu('v_lshrrev_b32', t2, 1, t0),
          valu('v_xor_b32', t2, t1, t2), valu('v_lshlrev_b32', t2, 4, t2), valu('v_lshl_add_u32', t2, t0, 7, t2),
          salu('s_lshl_b32', sT0, wr_, 14), salu('s_add_u32', sT0, sT0, hex(KV_C)),
          valu('v_add_u32', vX[0], sT0, t2), valu('v_xor_b32', vX[1], 64, vX[0])]
    L += [valu('v_bfe_u32', t0, lane, 2, 3),
          valu('v_lshrrev_b32', t1, 5, lane),
          valu('v_and_b32', t2, 3, lane), valu('v_lshlrev_b32', t2, 3, t2),
          valu('v_lshl_add_u32', t2, t0, 7, t2), valu('v_lshl_add_u32', t2, t1, 11, t2),
          valu('v_lshrrev_b32', t0, 1, t0)]
    L += [salu('s_lshl_b32', sT0, wc_, 13)]
    for cb in range(4):
        L += [valu('v_xor_b32', t1, cb, t0), valu('v_lshl_add_u32', t1, t1, 5, t2), valu('v_add_u32', vY[cb], sT0, t1)]
    L += [valu('v_mov_b32', vOne, 1), valu('v_mov_b32', t0, hex(OOB)), vcmp('v_cmp_eq_u32', 'vcc', 0, vTid),
          raw(f'v_cndmask_b32_e64 {vSig}, {t0}, 0, vcc', 'valu', rd=t0.regs() + ['vcc'], wr=vSig.regs())]
    L += [salu('s_lshl_b32', kvS, sH, 20), salu('s_lshl_b32', sT0, sP, 17), salu('s_add_u32', kvS, kvS, sT0),
          salu('s_lshl_b32', sT0, wr_, 16), salu('s_add_u32', kvS, kvS, sT0), salu('s_add_u32', kvS, kvS, hex(KV)),
          salu('s_lshl_b32', sT0, sB[9], 11), salu('s_add_u32', sB[5], sB[4], sT0),
          salu('s_lshl_b32', sT0, sB[9], 13), salu('s_add_u32', sB[6], sB[4], sT0),
          salu('s_add_u32', sB[6], sB[6], hex(16 * K1))]
    L += [valu('v_mov_b32', t0, 0), salu('s_lshl_b32', sT0, sWG, 8), salu('s_add_u32', sT0, sT0, hex(CNT)),
          scmp('s_cmp_lt_u32', sWG, 105), salu('s_cselect_b32', sT0, sT0, hex(OOB)),
          vstore(t0, vSig, sWS, sT0, flags='sc1')]
    stamp(L)
    L.append(wait_for(L, lnl))
    stamp(L)
    head_ = L
    L = []
    e = V(48, 24)
    acc, tmp, mean2, mb2, rs2 = V(44, 2), V(46), V(72, 2), V(74, 2), V(76, 2)
    half = ['s_mov_b32 exec_lo, 0xffff', 's_mov_b32 exec_hi, 0xffff']
    full = ['s_mov_b64 exec, -1']

    def ex(x): return [raw(t, wr=['exec']) for t in x]

    def pk(op, d, a, b, c=None, mod=''):
        src = [a, b] + ([c] if c is not None else [])
        return valu(op, d, *src, mod=mod)
    NEG1 = 'neg_lo:[0,1] neg_hi:[0,1]'
    for n in range(3):
        for d in range(4):
            L += [valu('v_lshlrev_b32', e[8 * n + 2 * d], 16, xr[n][d]),
                  valu('v_and_b32', e[8 * n + 2 * d + 1], '0xffff0000', xr[n][d])]
    L.append(pk('v_pk_add_f32', acc, e[0:2], e[2:4]))
    for i in range(4, 24, 2):
        if i == 16:
            L += ex(half)
        L.append(pk('v_pk_add_f32', acc, acc, e[i:i + 2]))
    L += ex(full)

    def reduce32(a):
        L.append(valu('v_add_f32', a[0], a[0], a[1]))
        for ctl in ('quad_perm:[1,0,3,2]', 'quad_perm:[2,3,0,1]', 'row_half_mirror', 'row_mirror'):
            L.append(valu('v_add_f32_dpp', a[0], a[0], a[0], mod=f'{ctl} row_mask:0xf bank_mask:0xf'))
        L.extend([valu('v_mov_b32', tmp, a[0]), permswap('v_permlane16_swap_b32', a[0], tmp),
                  valu('v_add_f32', a[0], a[0], tmp)])
    reduce32(acc)
    inv640 = hex(struct.unpack('<I', struct.pack('<f', 1.0 / 640))[0])
    L += [valu('v_mul_f32', mean2[0], inv640, acc[0]), valu('v_mul_f32', mean2[1], inv640, acc[0])]
    dd = V(78, 2)
    for i in range(0, 24, 2):
        if i == 16:
            L += ex(half)
        L.append(pk('v_pk_add_f32', dd, e[i:i + 2], mean2, mod=NEG1))
        L.append(pk('v_pk_mul_f32', acc, dd, dd) if i == 0 else pk('v_pk_fma_f32', acc, dd, dd, acc))
    L += ex(full)
    reduce32(acc)
    sq, sd = acc[0], acc[1]
    eps = hex(struct.unpack('<I', struct.pack('<f', 1e-5))[0])
    L += [valu('v_mul_f32', sq, inv640, sq), valu('v_cvt_pk_bf16_f32', tmp, mean2[0], sq),
          valu('v_lshlrev_b32', mb2[0], 16, tmp), valu('v_lshlrev_b32', mb2[1], 16, tmp),
          valu('v_and_b32', sq, '0xffff0000', tmp),
          valu('v_add_f32', sq, eps, sq), valu('v_cvt_pk_bf16_f32', tmp, sq, sq), valu('v_lshlrev_b32', sq, 16, tmp),
          valu('v_sqrt_f32', sd, sq), valu('v_cvt_pk_bf16_f32', tmp, sd, sd), valu('v_lshlrev_b32', sd, 16, tmp),
          valu('v_rcp_f32', rs2[0], sd),
          raw(f'v_fma_f32 {tmp}, -{sd}, {rs2[0]}, 1.0', 'valu', rd=sd.regs() + rs2[0].regs(), wr=tmp.regs()),
          valu('v_fmac_f32', rs2[0], tmp, rs2[0])]
    if int(OPT['fold']):
        L.append(valu('v_mul_f32', rs2[0], hex(SCALE), rs2[0]))
    L.append(valu('v_mov_b32', rs2[1], rs2[0]))
    for n in range(3):
        for d in range(4):
            ab = e[8 * n + 2 * d:8 * n + 2 * d + 2]
            L += [pk('v_pk_add_f32', ab, ab, mb2, mod=NEG1), valu('v_cvt_pk_bf16_f32', tmp, ab[0], ab[1]),
                  valu('v_lshlrev_b32', ab[0], 16, tmp), valu('v_and_b32', ab[1], '0xffff0000', tmp),
                  pk('v_pk_mul_f32', ab, ab, rs2), valu('v_cvt_pk_bf16_f32', xr[n][d], ab[0], ab[1])]
    W1L = []
    kv_dma_w(W1L, 0)
    kv_dma_c(W1L, 0)
    kv_dma_w(W1L, 1)
    G = [W1L[3 * q:3 * q + 3] for q in range(24)]
    if not int(OPT['lateinit']):
        head_[head_.index(lnl[2]) + 1 + 6:head_.index(lnl[2]) + 1 + 6] = sum(G[:16], [])
        G = G[16:]
        k = [n for n, i in enumerate(head_) if i.k == 'wait' and i.vm is not None][-1]
        head_[k] = wait_for(head_[:k], lnl)
    L = interleave(L, G + ([] if int(OPT['early']) else touches))
    L = head_ + L
    L += [valu('v_lshrrev_b32', t0, 6, row), valu('v_mul_u32_u24', t0, 20, t0), valu('v_bfe_u32', t1, lane, 2, 3),
          valu('v_add_u32', t0, t0, t1), valu('v_bfe_u32', t1, row, 4, 2), valu('v_lshl_add_u32', t0, t0, 2, t1),
          valu('v_and_b32', t1, 3, lane), valu('v_and_b32', t2, 15, row), valu('v_lshl_add_u32', t1, t1, 4, t2),
          valu('v_lshlrev_b32', t1, 4, t1), valu('v_lshl_add_u32', t0, t0, 10, t1)]
    L += [salu('s_mov_b32', sT0, hex(XN)), vstore(xr[0], t0, sWS, sT0, flags='sc1'),
          salu('s_mov_b32', sT1, hex(XN + 32768)), vstore(xr[1], t0, sWS, sT1, flags='sc1')]
    L += ex(half)
    L += [salu('s_mov_b32', sT0, hex(XN + 65536)), vstore(xr[2], t0, sWS, sT0, flags='sc1')]
    L += ex(full)
    stamp(L)
    vm = [i for i in L if i.k in VMEM]
    last0 = max(n for n, i in enumerate(vm) if i.tag in (('w0', 0), ('c0', 0)))
    last1 = max(n for n, i in enumerate(vm) if i.tag == ('w1', 1))
    return linear(L), (len(vm) - 1 - last0, len(vm) - 1 - last1), late


def interleave(main, groups):
    out = []
    narrowed = False
    k = 0
    for n, i in enumerate(main):
        if i.t.startswith('s_mov_b32 exec'):
            narrowed = True
        if i.t.startswith('s_mov_b64 exec'):
            narrowed = False
        out.append(i)
        while k < len(groups) and not narrowed and n + 1 >= (k + 1) * len(main) // (len(groups) + 1):
            out += groups[k]
            k += 1
    assert k == len(groups)
    return out


def KS(): return int(OPT['kvstep'])


def kv_dma_c(L, s, g0=None):
    out = []
    for q in range(8):
        out.append(piece(L, vC1 if q & 1 else vC0, sC, sB[0], q * 8192 + s * 128, sB[2], (s & 1) * 32 * K1 + q * K1,
                         tag=(f'c{s & 1}', s), dl=None if g0 is None else g0 + 3 + KS() * q,
                         rel=None if g0 is None else g0 + KS() * q))
    return out


def kv_dma_w(L, s, g0=None):
    out = []
    for q in range(8):
        ks, m, hf = q >> 2, (q >> 1) & 1, q & 1
        out.append(piece(L, vW, sWKV, sB[1], (64 * s + 32 * ks + 16 * m + 4 * hf) * 8192, sB[3],
                         (s & 1) * 32 * K1 + q * K1, tag=(f'w{s & 1}', s),
                         dl=None if g0 is None else g0 + 3 + KS() * (8 + q),
                         rel=None if g0 is None else g0 + KS() * (8 + q)))
    return out


def kv_acc(i, jj):
    return A(4 * jj, 4) if i == 0 else V(32 + ((i - 1) * 8 + jj) * 4, 4)


def kv_Y(par, jj, ks): return A(32 + 64 * par + (jj * 2 + ks) * 4, 4)
def kv_X(n, ks): return A(160 + 8 * (n % 3) + 4 * ks, 4)


def kv_readY(L, s, g0=None):
    n = 0
    for jj in range(8):
        for ks in range(2):
            for hf in range(2):
                off = (s & 1) * 32 * K1 + (16 * K1 if jj >= 4 else 0) + ks * 4096 + hf * K1
                L.append(ds_tr(kv_Y(s & 1, jj, ks)[2 * hf:2 * hf + 2], vY[jj & 3], off, tag=(f'w{s & 1}', s),
                               rel=None if g0 is None else g0 + 16 + 3 * n))
                n += 1


def kv_readX(L, s, i):
    for ks in range(2):
        L.append(ds_read(kv_X(s * 8 + i, ks), vX[ks], (s & 1) * 32 * K1 + i * 2048, tag=(f'c{s & 1}', s)))


def kv_mfma(L, s, i):
    for jj in range(8):
        for ks in range(2):
            acc = kv_acc(i, jj)
            c = 0 if (s == 0 and ks == 0) else acc
            x, y = kv_X(s * 8 + i, ks), kv_Y(s & 1, jj, ks)
            L.append(mfma(acc, y, x, c) if jj < 4 else mfma(acc, x, y, c))


_tset = [0]


def pack2(L, b0, b1, dest=None):
    if dest is not None:
        d = dest
        L += [valu('v_cvt_pk_bf16_f32', d[3], b1[2], b1[3]), valu('v_cvt_pk_bf16_f32', d[2], b1[0], b1[1]),
              valu('v_cvt_pk_bf16_f32', d[0], b0[0], b0[1]), valu('v_cvt_pk_bf16_f32', d[1], b0[2], b0[3])]
        return d
    if b0.k == 'a' or b1.k == 'a':
        _tset[0] ^= 1
        t = V(16 + 8 * _tset[0], 8)
        s0, s1 = b0, b1
        if b0.k == 'a':
            for r in range(4):
                L.append(valu('v_accvgpr_read_b32', t[r], b0[r]))
            s0 = t[0:4]
        if b1.k == 'a':
            for r in range(4):
                L.append(valu('v_accvgpr_read_b32', t[4 + r], b1[r]))
            s1 = t[4:8]
        d = t[0:4]
    else:
        s0, s1, d = b0, b1, b0
    L += [valu('v_cvt_pk_bf16_f32', d[0], s0[0], s0[1]), valu('v_cvt_pk_bf16_f32', d[1], s0[2], s0[3]),
          valu('v_cvt_pk_bf16_f32', d[2], s1[0], s1[1]), valu('v_cvt_pk_bf16_f32', d[3], s1[2], s1[3])]
    return d


def kv_epi(L, u, g0):
    groups = []
    for i in (2 * u, 2 * u + 1) if u < 3 else (7, 6):
        for dcl in range(2):
            b0, b1 = kv_acc(i, 2 * dcl), kv_acc(i, 2 * dcl + 1)
            dest = kv_acc(7, 2 * dcl + 1) if i == 6 else None
            groups.append((b0, b1, dest, sB[5], (i >> 2) * 32 * K1 + (i & 3) * 4 * K1 + dcl * K1))
    for jj in range(4, 8):
        b0, b1 = kv_acc(2 * u, jj), kv_acc(2 * u + 1, jj)
        groups.append((b0, b1, b1 if u == 3 else None, sB[6], (u >> 1) * 32 * K1 + (u & 1) * K1 + (jj - 4) * 2 * K1))
    out = []
    for n, (b0, b1, dest, base, off) in enumerate(groups):
        d = pack2(L, b0, b1, dest)
        if u == 0:
            kv_store(L, (d, base, off), g0 + 11 * n)
            continue
        if u < 3:
            h = A((64 if u == 1 else 0) + 4 * n, 4)
            for r in range(4):
                L.append(valu('v_accvgpr_write_b32', h[r], d[r]))
            d = h
        out.append((d, base, off))
    return out


def kv_store(L, grp, g):
    d, base, off = grp
    t = rot()
    L.append(salu('s_add_u32', t, base, hex(off), rel=g - 3))
    L.append(vstore(d, vL16, sWS, t, flags='sc1', rel=g, dl=g + 4))
    return L[-1]


def qh_acc(jj, qb): return V(32 + (jj * 4 + qb) * 4, 4)
def qh_xn(s, ks, qb): return A((0 if s == 9 else (208, 32, 96)[s % 3]) + (ks * 4 + qb) * 4, 4)


QSEQ = {}


def qh_W(s, jj, ks):
    n = QSEQ[s, jj]
    if n >= 7 * 12 + 16:
        return V(224 + 8 * (n % 3) + 4 * ks, 4)
    return A((184, 192, 200, 240, 248)[n % 5] + 4 * ks, 4)


def aO(db, qb): return A((db * 4 + qb) * 4, 4)
def aL(qb): return A(128 + 4 * qb, 4)
def aQ(qb, dc): return A(144 + (qb * 4 + dc) * 4, 4)
def aF(n): return A(208 + 4 * (n % 12), 4)


sQx, sQq, sQ1 = S(81), S(82), S(83)
sQl = [S(86), S(87)]


def qh_setup(L):
    L += [salu('s_sub_u32', sT0, 15, sP), salu('s_lshl_b32', sT0, sT0, 1), salu('s_lshl_b32', sT1, sP, 1),
          glue([scmp('s_cmp_lt_u32', sW, 2), salu('s_cselect_b32', sRT2, sT0, sT1)]),
          salu('s_and_b32', sT0, sW, 1), salu('s_add_u32', sRT2, sRT2, sT0),
          salu('s_mul_i32', sQx, sRT2, 20 * 4096),
          salu('s_lshl_b32', sQq, sH, 8), salu('s_lshr_b32', sT1, sW, 1), salu('s_lshl_b32', sT1, sT1, 7),
          salu('s_add_u32', sQq, sQq, sT1), salu('s_lshl_b32', sT0, sT0, 18), salu('s_add_u32', sQq, sQq, sT0),
          salu('s_lshl_b32', sQl[0], sW, 12),
          salu('s_mul_i32', sQ1, sW, 16 * 3456), salu('s_lshl_b32', sT0, sH, 7), salu('s_add_u32', sQ1, sQ1, sT0),
          glue([scmp('s_cmp_lt_u32', sH, 27), salu('s_cselect_b32', sQ1, sQ1, hex(OOB))]),
          salu('s_lshl_b32', sQl[1], sW, 11), salu('s_add_u32', sQl[1], sQl[1], hex(16 * K1))]
    if XN:
        L.append(salu('s_add_u32', sQx, sQx, hex(XN)))


def pace(g0, n, st=None):
    st = st or int(OPT['qhstep'])
    return {} if g0 is None else dict(dl=g0 + 6 + st * n, rel=g0 + 2 + st * n)


def qh_loads(L, s, g0=None, parked=(), st=None):
    out = []
    sl = QH_S[s % 3]
    parked = list(parked)
    n = [0]

    def step():
        if parked and n[0] % 4 == 1:
            kv_store(L, parked.pop(0), pace(g0, n[0])['rel'])
            n[0] += 1
        n[0] += 1
        return pace(g0, n[0] - 1, st)
    for m in range(2):
        for hf in range(2):
            out.append(piece(L, vW, sWQ, sQq, (64 * s + 16 * m + 4 * hf) * 8192, sQl[0], sl + (m * 2 + hf) * K1,
                             tag=(f'q{s % 3}', s), **step()))
    for hf in range(2):
        out.append(piece(L, vW1, sW1, sQ1, (64 * s + 4 * hf) * 3456, sQl[1], sl + hf * K1, tag=(f'q{s % 3}', s),
                         **step()))
    for ks in range(2):
        t = sQ[ks]
        L.append(salu('s_add_u32', t, sQx, hex((2 * s + ks) * 4096)))
        for qb in range(4):
            kw = step()
            out.append(vload(qh_xn(s, ks, qb), vL16, sWS, t, off=qb * K1, flags='sc1', **kw))
            L.append(out[-1])
    while parked:
        kv_store(L, parked.pop(0), pace(g0, n[0])['rel'])
        n[0] += 1
    return out


sQ = [S(94), S(93)]


def qh_readW(L, s, jj):
    for ks in range(2):
        for hf in range(2):
            off = QH_S[s % 3] + (jj >> 2) * 8 * K1 + ks * 4096 + hf * K1
            ad = vYQ[jj & 3]
            if off >= 128 * K1:
                off -= 128 * K1
                ad = vY[jj & 3]
            L.append(ds_tr(qh_W(s, jj, ks)[2 * hf:2 * hf + 2], ad, off, tag=(f'q{s % 3}', s)))


vYQ = [V(6), V(7), V(2), V(3)]


def qh_mfma(L, s, jj):
    for qb in range(4):
        for ks in range(2):
            acc = qh_acc(jj, qb)
            L.append(mfma(acc, qh_W(s, jj, ks), qh_xn(s, ks, qb), 0 if (s == 0 and ks == 0) else acc))


def qh_epi_q(L, dc):
    for qb in range(4):
        b0, b1 = qh_acc(2 * dc, qb), qh_acc(2 * dc + 1, qb)
        if not int(OPT['fold']):
            for b in (b0, b1):
                for r in range(4):
                    L.append(valu('v_mul_f32', b[r], hex(SCALE), b[r]))
        d = pack2(L, b0, b1)
        for r in range(4):
            L.append(valu('v_accvgpr_write_b32', aQ(qb, dc)[r], d[r]))


vQX = V(254)


def qh_epi_h(L, fc):
    st = []
    t = rot()
    L.append(salu('s_add_u32', t, sB[4], hex(fc * 4096)))
    for qb in range(4):
        d = pack2(L, qh_acc(8 + 2 * fc, qb), qh_acc(9 + 2 * fc, qb))
        for r in range(4):
            L.append(valu('v_pk_max_i16', d[r], d[r], 0))
        st.append(vstore(d, vL16, sWS, t, off=qb * K1, flags='sc1'))
        L.append(st[-1])
    return st


def gen_proj(first, late):
    L = []
    L += [wait(vm=first[0], lg=0, fence=True), barrier()]
    stamp(L, 1)
    n0 = len(L)
    kv_readY(L, 0)
    for k, i in enumerate(L[n0:]):
        i.bb = True
    L += [wait(vm=first[1] + (1 if OPT['stamps'] else 0), lg=0, fence=True), barrier()]
    g = 0
    parked = []
    need = []
    for s in range(8):
        if s:
            L += [wait_for(L, need, lg=0, fence=True), barrier()]
            stamp(L)
        if s == 1:
            L.append(atomic_add(vOne, vSig, sDBG, 0))
        if s == 6:
            poll(L, 'A', sDBG, 0, 256, V(30), V(31), sampled=True)
        kv_readX(L, s, 0)
        if s:
            kv_mfma(L, s - 1, 7)
            g += 16
        g0 = g - (16 if s else 0)
        need = []
        if s + 1 < 8:
            need += kv_dma_c(L, s + 1, g0)
        if s + 2 < 8:
            need += kv_dma_w(L, s + 2, g0)
        late(L, s, g0 + 84)
        if s + 1 < 8:
            kv_readY(L, s + 1, g0)
        if s == 5:
            need.append(poll_issue(L, sDBG, 0, V(30), V(31), rel=g0 + 84))
        if s == 4:
            qh_setup(L)
        if s == 6:
            ld = {0: qh_loads(L, 0, g0 + 42)}
        if s == 7:
            ld[1] = qh_loads(L, 1, g0 - 2, st=3)
        for i in range(7):
            kv_readX(L, s, i + 1)
            kv_mfma(L, s, i)
            g += 16
            if s == 7 and i in (1, 3, 5):
                parked += kv_epi(L, i >> 1, g + 6)
            if s == 7 and i == 2:
                pass
    L.append(salu('s_lshl_b32', sT1, sB[9], 13))
    for cb in range(4):
        L.append(valu('v_subrev_u32', vYQ[cb], sT1, vY[cb]))
        L.append(valu('v_add_u32', vY[cb], hex(128 * K1), vYQ[cb]))
    seq = [(s, jj) for s in range(7) for jj in range(12)] + [(s, jj) for s in (7, 8, 9) for jj in range(8)] + \
          [(s, jj) for s in (7, 8, 9) for jj in range(8, 12)]
    global QSEQ
    QSEQ = {k: n for n, k in enumerate(seq)}
    started = set()
    post = []
    nread = 0
    for n, (s, jj) in enumerate(seq):
        nxt = seq[n + 1] if n + 1 < len(seq) else None
        for (s2, head_of) in ([(s, True)] if n == 0 else []) + ([(nxt[0], False)] if nxt else []):
            if s2 in started:
                continue
            started.add(s2)
            L += [wait_for(L, ld[s2], lg=0, fence=True), barrier()]
            stamp(L)
            g0 = g
            if s2 == 8:
                L += [salu('s_lshl_b32', sB[7], sH, 8), salu('s_add_u32', sB[7], sB[7], hex(CNT)),
                      atomic_add(vOne, vSig, sWS, sB[7])]
            if s2 == 0:
                qh_readW(L, *seq[0])
                qh_readW(L, *seq[1])
                nread = 2
                kv_mfma(L, 7, 7)
                g += 16
                parked += kv_epi(L, 3, g)
            post.append((s2, g0))
        if nxt is None:
            break
        while nread < len(seq) and nread <= n + 2 and seq[nread][0] in started:
            qh_readW(L, *seq[nread])
            nread += 1
        if (s, jj) == (9, 4):
            smp = poll_issue(L, sWS, sB[7], V(30), V(31), rel=g, dl=g + 2)
        if (s, jj) == (8, 9):
            L.append(wait_for(L, [smp]))
            poll(L, 'B', sWS, sB[7], 8, V(30), V(31), sampled=True)
            k0 = [dma(vL16, sWS, sKsrc, off=q * K1, flags='sc1', tag=('Kx0', 't0'), dl=g + 2 + 3 * q,
                      rel=g + 3 * q) for q in range(4)]
            L += [salu('s_lshl_b32', 'm0', sW, 12)] + k0
        qh_mfma(L, s, jj)
        g += 8
        for s2, g0 in post:
            if s2 + 2 < 10:
                k = (4, 4, 4, 3, 3, 3, 3, 0)[s2]
                ld[s2 + 2] = qh_loads(L, s2 + 2, g0, parked[:k], st=4 if s2 == 7 else None)
                del parked[:k]
            if s2 == 3:
                k3_setup(L)
            if s2 == 8:
                att_setup(L)
                k3_setup_g2(L)
        post = []
        if s == 9 and jj in (1, 3, 5, 7):
            qh_epi_q(L, jj >> 1)
    assert not parked and nread == len(seq)
    L += [wait_for(L, k0, lg=0, fence=True), barrier()]
    stamp(L, t=vTmp[23])
    tk = ('Kx0', 't0')
    for dc in range(4):
        readK(L, 0, 0, dc, tk)
    qh_mfma(L, 9, 11)
    g += 8
    for what, (goff, lds, tag) in enumerate(((16 * K1, 32 * K1, ('Vx0', None)), (32 * K1, 16 * K1, ('Kx1', None)))):
        t = rot()
        L += [salu('s_lshl_b32', t, sW, 12), salu('s_add_u32', 'm0', t, hex(lds)), salu('s_add_u32', t, sKsrc, hex(goff))]
        for q in range(4):
            gg = g - 4 + 6 * (what * 4 + q)
            L.append(dma(vL16, sWS, t, off=q * K1, flags='sc1', tag=tag, rel=gg, dl=gg + 3))
    att_setup2(L)
    qh_epi_h(L, 0)
    qh_epi_h(L, 1)
    for qb in range(4):
        for dc in range(4):
            L.append(mfma(vS(0, 0, qb), aF(dc), aQ(qb, dc), vS(0, 0, qb) if dc else 0))
    zero_acc(L, vTmp[12:16])
    m = vTmp[4:8]
    rowmax(L, 0, m, kvbs=(0,))
    for qb in range(4):
        for r in range(4):
            L.append(valu('v_sub_f32', vNM(qb)[r], 0, m[qb]))
            L.append(valu('v_sub_f32', vS(0, 0, qb)[r], vS(0, 0, qb)[r], m[qb]))
    L.append(ds_write(vMX, m))
    xphase(L, 0, 'n', tk, kvbs=(1, 2, 3))
    zero_next(L, 1, vTmp[12:16])
    for qb in range(4):
        for dc in range(4):
            L.append(ds_write(vQX, aQ(qb, dc), (qb * 4 + dc) * K1))
    softmax_blocks(L, 0, (0, 1))
    return schedule(L, verbose='proj')


def vS(par, kvb, qb): return V(16 + 64 * par + (kvb * 4 + qb) * 4, 4)
def vP(par, qb, kc): return V(144 + 32 * par + (qb * 2 + kc) * 4, 4)
def vNM(qb): return V(208 + 4 * qb, 4)


vOnes = V(224, 4)
vTmp = V(228, 24)
sHB, sVsrc, sKsrc, sLd = sB[0], sB[1], sB[2], sB[3]
sCtx = sB[5]


vMX = V(255)


def att_setup(L):
    t0, t1 = V(16), V(17)
    L += [salu('s_mul_i32', sB[4], sRT2, 182 * 4096), salu('s_lshl_b32', sT1, sH, 14),
          salu('s_add_u32', sCtx, sB[4], sT1), salu('s_add_u32', sCtx, sCtx, hex(CH)),
          salu('s_lshl_b32', sT1, sH, 13),
          salu('s_add_u32', sB[4], sB[4], sT1), salu('s_add_u32', sB[4], sB[4], hex(CH + 128 * 4096)),
          glue([scmp('s_cmp_lt_u32', sH, 27), salu('s_cselect_b32', sB[4], sB[4], hex(OOB))]),
          salu('s_lshl_b32', sT1, sW, 14), salu('s_add_u32', sT1, sT1, hex(QX)),
          valu('v_add_u32', vQX, sT1, vL16),
          salu('s_lshl_b32', sT1, sW, 10), salu('s_add_u32', sT1, sT1, hex(MX)),
          glue([scmp('s_cmp_lt_u32', sW, 2), salu('s_cselect_b32', sT1, sT1, hex(192 * K1))]),
          valu('v_add_u32', vMX, sT1, vL16),
          salu('s_lshl_b32', sHB, sH, 20), salu('s_add_u32', sHB, sHB, hex(KV)),
          salu('s_lshl_b32', sT1, sW, 12), salu('s_add_u32', sKsrc, sHB, sT1),
          salu('s_and_b32', sT0, sW, 1), salu('s_lshl_b32', sT0, sT0, 13),
          salu('s_add_u32', sVsrc, sHB, sT0), salu('s_add_u32', sVsrc, sVsrc, hex(48 * K1)),
          salu('s_lshr_b32', sT1, sW, 1), salu('s_lshl_b32', sT1, sT1, 16), salu('s_add_u32', sLd, sT0, sT1),
          salu('s_mov_b32', sJ, 1)]
    L += [valu('v_and_b32', t0, 15, vTid), valu('v_bfe_u32', t1, vTid, 4, 2), valu('v_lshlrev_b32', t1, 2, t1)]
    for r in range(4):
        L += [vcmp('v_cmp_le_u32', sMask[r], t1, t0), valu('v_add_u32', t1, 1, t1)]
    L += [valu('v_mov_b32', vNegBig, hex(NEGBIG)), valu('v_mov_b32', vKV, vL16),
          valu('v_and_b32', t0, 63, vTid), valu('v_mov_b32', t1, hex(OOB)), vcmp('v_cmp_eq_u32', 'vcc', 0, t0),
          raw(f'v_cndmask_b32_e64 {vSigW}, {t1}, 0, vcc', 'valu', rd=t1.regs() + ['vcc'], wr=vSigW.regs())]


def att_setup2(L):
    L += [salu('s_add_u32', sKsrc, sVsrc, hex(16 * K1))]
    for r in range(4):
        L.append(valu('v_mov_b32', vOnes[r], '0x3f803f80'))


def att_dma(L, par, which='VK', stream=None, g0=1, step=None, tags=(None, None), both=False):
    n = 0
    step = step or int(OPT['attstep'])
    for what, src, lds, tg in (('V', sVsrc, 32 * K1 + par * 16 * K1, tags[0]), ('K', sKsrc, (par ^ 1) * 16 * K1, tags[1])):
        if what not in which:
            continue
        for grp in range(4 if both else 2):
            t = rot()
            L += [salu('s_add_u32', 'm0', sLd, hex(lds + grp * 4 * K1)), salu('s_add_u32', t, src, hex(grp * 4 * K1))]
            for q in range(4):
                L.append(dma(vL16, sWS, t, off=q * K1, flags='sc1', tag=tg, dl=g0 + step * n + 3, rel=g0 + step * n))
                n += 1
        L.append(salu('s_add_u32', src, src, hex(32 * K1)))


def readK(L, par, kvb, dc, tag):
    L.append(ds_read(aF(kvb * 4 + dc), vKV, par * 16 * K1 + (kvb * 4 + dc) * K1, tag=tag))


def readV(L, par, db, kc, tag, slot=None):
    f = aF(16 + db * 2 + kc) if slot is None else slot
    L.append(ds_read(f, vKV, 32 * K1 + (par ^ 1) * 16 * K1 + (db * 2 + kc) * K1, tag=tag))
    return f


def tail(L, par):
    for qb in range(4):
        for kc in range(2):
            L.append(mfma(aL(qb), vOnes, vP(par, qb, kc), aL(qb)))
    for qb in range(4):
        for kc in range(2):
            L.append(mfma(aO(7, qb), aF(16 + 14 + kc), vP(par, qb, kc), aO(7, qb)))


def softmax_blocks(L, par, kvbs, diag=False):
    for kvb in kvbs:
        for qb in range(4):
            s = vS(par, kvb, qb)
            p = vP(par, qb, kvb >> 1)
            o = 2 * (kvb & 1)
            for r in range(4):
                L.append(valu('v_exp_f32', s[r], s[r]))
                if r & 1:
                    L.append(valu('v_cvt_pk_bf16_f32', p[o + (r >> 1)], s[r - 1], s[r]))


def xphase(L, par, mode, tag, skip_first_reads=False, kvbs=range(4)):
    for kvb in kvbs:
        if not (skip_first_reads and kvb == 0):
            for dc in range(4):
                readK(L, par, kvb, dc, tag)
        for qb in range(4):
            s = vS(par, kvb, qb)
            if mode == 'd' and kvb > qb:
                for r in range(4):
                    L.append(valu('v_mov_b32', s[r], hex(NEGBIG)))
                continue
            if mode == 'd' and kvb == qb:
                for r in range(4):
                    L.append(cndmask(s[r], vNegBig, vNM(qb)[r], sMask[r], tag='ci'))
            for dc in range(4):
                c = s if dc else (0 if mode == 'z' else (s if (mode == 'd' and kvb == qb) else vNM(qb)))
                L.append(mfma(s, aF(kvb * 4 + dc), aQ(qb, dc), c))


vNegBig = V(5)


def yhead(L, par, tag):
    for db in range(8):
        fr = [readV(L, par, db, kc, tag) for kc in range(2)]
        if db == 7:
            break
        for qb in range(4):
            for kc in range(2):
                L.append(mfma(aO(db, qb), fr[kc], vP(par ^ 1, qb, kc), aO(db, qb)))


def yfull(L, par, tag, diag=False):
    n = 0
    for kc in range(2):
        qbs = (2, 3) if (diag and kc == 1) else range(4)
        for qb in qbs:
            L.append(mfma(aL(qb), vOnes, vP(par ^ 1, qb, kc), aL(qb)))
        for db in range(8):
            f = readV(L, par, db, kc, tag, slot=aF((0, 1, 2, 3, 4, 5, 8, 9, 10, 11, 6, 7)[n % 12]))
            n += 1
            for qb in qbs:
                L.append(mfma(aO(db, qb), f, vP(par ^ 1, qb, kc), aO(db, qb)))


def head(L, vm=0):
    L += [wait(vm=vm, lg=0, fence=True), barrier()]
    stamp(L, t=vTmp[23])


def tg(stream, par):
    return (f'K{stream}{par}', None), (f'V{stream}{par ^ 1}', None)


sPw = [S(88), S(89)]


def body_normal(par, mode, with_dma, name, vm=0):
    L = [label(name)]
    head(L, vm if with_dma else None)
    if mode == 'n' and not with_dma and int(OPT['touch']):
        L += [vload(vTmp[18], vQX, sWO, sPw[0], rel=int(OPT['tpos']), tag='touch'), vload(vTmp[19], vMX, sW2, sPw[1], rel=int(OPT['tpos']) + 2, tag='touch'),
              salu('s_add_u32', sPw[0], sPw[0], 32 * 13 * 128), salu('s_add_u32', sPw[1], sPw[1], 32 * 6 * 128)]
    tk, tv = tg('x', par)
    for dc in range(4):
        readK(L, par, 0, dc, tk)
    tail(L, par)
    if with_dma:
        att_dma(L, par, tags=((f'Vx{par}', None), (f'Kx{par ^ 1}', None)))
    softmax_blocks(L, par ^ 1, (2, 3))
    xphase(L, par, mode, tk, skip_first_reads=True)
    softmax_blocks(L, par, (0, 1))
    yhead(L, par, tv)
    L.append(salu('s_add_u32', sJ, sJ, 1))
    return schedule(L, verbose=name)


def zero_acc(L, z):
    for r in range(4):
        L.append(valu('v_mov_b32', z[r], 0))
    for n in range(9):
        L.append(mfma32(A(16 * n, 16), z, z, 0))


def zero_next(L, par_next, z):
    for n in range(2):
        L.append(mfma32(V(144 + 32 * par_next + 16 * n, 16), z, z, 0))
    for kc in range(2):
        L.append(mfma(aF(30 + kc), z, z, 0))


def rowmax(L, par, dst, kvbs=range(4)):
    for qb in range(4):
        vals = [vS(par, kvb, qb)[r] for kvb in kvbs for r in range(4)]
        m = dst[qb]
        L.append(valu('v_max3_f32', m, vals[0], vals[1], vals[2]))
        for n in range(3, len(vals) - 1, 2):
            L.append(valu('v_max3_f32', m, m, vals[n], vals[n + 1]))
        L.append(valu('v_max_f32', m, m, vals[-1]))
    for op in ('v_permlane16_swap_b32', 'v_permlane32_swap_b32'):
        for qb in range(4):
            L.append(valu('v_mov_b32', vTmp[8 + qb], dst[qb]))
        for qb in range(4):
            L.append(permswap(op, dst[qb], vTmp[8 + qb]))
        for qb in range(4):
            L.append(valu('v_max_f32', dst[qb], dst[qb], vTmp[8 + qb]))


def mask_diag(L, par):
    for kvb in range(4):
        for qb in range(4):
            s = vS(par, kvb, qb)
            for r in range(4):
                if kvb > qb:
                    L.append(valu('v_mov_b32', s[r], hex(NEGBIG)))
                elif kvb == qb:
                    L.append(cndmask(s[r], vNegBig, s[r], sMask[r]))


def body_first():
    pre = linear([scmp('s_cmp_lt_u32', sW, 2), branch('s_cbranch_scc1', 'L_od1')])
    L = [wait(vm=8)]
    t0, t1 = vTmp[0], vTmp[1]
    if int(OPT['touch']):
        L += [salu('s_lshl_b32', sT0, sP, 1), salu('s_sub_u32', sT0, sT0, 1), salu('s_add_u32', sT1, sP, sW),
              salu('s_sub_u32', sT1, sT1, 3), salu('s_mul_i32', sT0, sT0, sT1), salu('s_lshl_b32', sT0, sT0, 5),
              salu('s_add_u32', sT0, sT0, sH), salu('s_mul_i32', sPw[0], sT0, 13 * 128),
              salu('s_mul_i32', sPw[1], sT0, 6 * 128),
              valu('v_lshlrev_b32', t0, 3, vL16), valu('v_mov_b32', t1, hex(OOB)), wait(lg=0),
              vcmp('v_cmp_gt_u32', 'vcc', 13 * 128, t0), cndmask(vQX, t1, t0, 'vcc'),
              vcmp('v_cmp_gt_u32', 'vcc', 6 * 128, t0), cndmask(vMX, t1, t0, 'vcc')]
    L += [scmp('s_cmp_lg_u32', sP, 0), branch('s_cbranch_scc1', 'L_on'),
          scmp('s_cmp_eq_u32', sW, 2), branch('s_cbranch_scc0', 'L_odn')]
    g1 = linear(L)
    L = []
    for kvb in (2, 3):
        for qb in range(4):
            sx = vS(0, kvb, qb)
            for r in range(4):
                if kvb > qb:
                    L.append(valu('v_mov_b32', sx[r], hex(NEGBIG)))
                elif kvb == qb:
                    L.append(cndmask(sx[r], vNegBig, sx[r], sMask[r]))
    mw = [vTmp[8], vTmp[9]]
    L += [valu('v_mov_b32', t0, '0xffff'), valu('v_mov_b32', t1, '0xffff0000')]
    for x in range(2):
        L += [cndmask(mw[x], 0, t0, sMask[2 * x]), cndmask(vTmp[10], 0, t1, sMask[2 * x + 1]),
              valu('v_or_b32', mw[x], mw[x], vTmp[10])]
    for x in range(2):
        L += [valu('v_and_b32', vP(0, 0, 0)[x], vP(0, 0, 0)[x], mw[x]), valu('v_mov_b32', vP(0, 0, 0)[2 + x], 0),
              valu('v_and_b32', vP(0, 1, 0)[2 + x], vP(0, 1, 0)[2 + x], mw[x])]
    L.append(branch('s_branch', 'L_t1_A'))
    return pre, g1, linear(L)


def normalise_store(L, qbs, tbase, srcs=None, rinv=None):
    st = []
    for qb in qbs:
        ri = V(tbase + 16 + qb % 4)
        if rinv is None:
            L += [valu('v_accvgpr_read_b32', ri, aL(qb)[0]), valu('v_rcp_f32', ri, ri)]
        for dc in range(4):
            t = V(tbase + 8 * (dc & 1), 8)
            for x in range(2):
                for r in range(4):
                    L.append(valu('v_accvgpr_read_b32', t[4 * x + r], aO(2 * dc + x, qb)[r]))
            for r in range(8):
                L.append(valu('v_mul_f32', t[r], t[r], ri))
            d = pack2(L, t[0:4], t[4:8])
            s = rot()
            L.append(salu('s_add_u32', s, sCtx, hex(dc * 4096)))
            st.append(vstore(d, vL16, sWS, s, off=qb * K1, flags='sc1'))
            L.append(st[-1])
    return st


def check_l(L, name, lvals):
    t, u = vTmp[0], vTmp[1]
    L += [valu('v_add_f32', t, lvals[0], lvals[1]), valu('v_min_f32', u, lvals[0], lvals[1])]
    if len(lvals) == 4:
        L += [valu('v_add_f32', t, t, lvals[2]), valu('v_add_f32', t, t, lvals[3]),
              valu('v_min3_f32', u, u, lvals[2], lvals[3])]
    thr = hex(LTHR) if not OPT['force_fb'] else '0'
    L += [valu('v_mov_b32', vTmp[2], thr), valu('v_mov_b32', vTmp[3], hex(LLOW)),
          vcmp('v_cmp_nlt_f32', 'vcc', t, vTmp[2]), vcmp('v_cmp_nge_f32', S(24, 2), u, vTmp[3]),
          salu('s_or_b64', 'vcc', 'vcc', S(24, 2)), branch('s_cbranch_vccz', f'L_ok_{name}')]


def fallback_call(name, ret_id):
    return linear([salu('s_mov_b32', sRole, ret_id), branch('s_branch', 'L_fallback'), label(f'L_ret_{ret_id}')])


def gen_fallback(nret):
    L = [label('L_fallback')]
    fr = [V(80 + 4 * n, 4) for n in range(16)]
    m, mn, al = vTmp[12:16], vTmp[4:8], vTmp[16:20]
    sT, sSrc = sB[8], sB[9]
    L.append(wait(vm=0, lg=0))
    for n in range(144):
        L.append(valu('v_accvgpr_write_b32', A(n), 0, tag='ci'))
    for qb in range(4):
        L.append(valu('v_mov_b32', m[qb], hex(NEGBIG)))
    L += [salu('s_mov_b32', sT, 0), salu('s_mov_b32', sSrc, sHB), label('L_fb_loop')]
    for g in range(4):
        L.append(salu('s_add_u32', sT1, sSrc, hex(g * 4 * K1)))
        for q in range(4):
            L.append(vload(fr[4 * g + q], vL16, sWS, sT1, off=q * K1, flags='sc1'))
    L.append(wait(vm=0))
    for kvb in range(4):
        for qb in range(4):
            for dc in range(4):
                L.append(mfma(vS(0, kvb, qb), fr[kvb * 4 + dc], aQ(qb, dc), vS(0, kvb, qb) if dc else 0))
    for g in range(4):
        L.append(salu('s_add_u32', sT1, sSrc, hex(16 * K1 + g * 4 * K1)))
        for q in range(4):
            L.append(vload(fr[4 * g + q], vL16, sWS, sT1, off=q * K1, flags='sc1'))
    L += [nop(7), salu('s_add_u32', sT, sT, 1), scmp('s_cmp_eq_u32', sT, sNt), branch('s_cbranch_scc0', 'L_fb_nomask')]
    P1 = linear(L)
    M = []
    mask_diag(M, 0)
    P2 = linear(M)
    L = [label('L_fb_nomask')]
    rowmax(L, 0, mn)
    for qb in range(4):
        L += [valu('v_max_f32', mn[qb], mn[qb], m[qb]), valu('v_sub_f32', al[qb], m[qb], mn[qb]),
              valu('v_exp_f32', al[qb], al[qb]), valu('v_mov_b32', m[qb], mn[qb])]
    t = vTmp[0]
    for qb in range(4):
        regs = [aO(db, qb)[r] for db in range(8) for r in range(4)] + [aL(qb)[r] for r in range(4)]
        for a in regs:
            L += [valu('v_accvgpr_read_b32', t, a), valu('v_mul_f32', t, t, al[qb]), valu('v_accvgpr_write_b32', a, t, tag='ci')]
    for kvb in range(4):
        for qb in range(4):
            for r in range(4):
                L.append(valu('v_sub_f32', vS(0, kvb, qb)[r], vS(0, kvb, qb)[r], m[qb]))
    softmax_blocks(L, 0, range(4))
    L.append(wait(vm=0))
    for qb in range(4):
        for kc in range(2):
            L.append(mfma(aL(qb), vOnes, vP(0, qb, kc), aL(qb)))
    for db in range(8):
        for qb in range(4):
            for kc in range(2):
                L.append(mfma(aO(db, qb), fr[db * 2 + kc], vP(0, qb, kc), aO(db, qb)))
    L += [nop(7), salu('s_add_u32', sSrc, sSrc, hex(32 * K1)), scmp('s_cmp_lt_u32', sT, sNt),
          branch('s_cbranch_scc1', 'L_fb_loop')]
    for r in range(nret):
        L += [scmp('s_cmp_eq_u32', sRole, r), branch('s_cbranch_scc1', f'L_ret_{r}')]
    L.append(raw('s_endpgm', 'br', bb=True))
    return P1, P2, linear(L)


def body_t1(role):
    par = 1 if role == 'A' else 0
    name = f'L_t1_{role}'
    L = [label(name)]
    head(L)
    tk, tv = tg('x', par)
    if role == 'A':
        L += [salu('s_lshl_b32', sT0, sP, 16), salu('s_sub_u32', sKsrc, sHB, sT0),
              salu('s_add_u32', sKsrc, sKsrc, hex(31 * 32 * K1))]
        att_dma(L, par, which='K', both=True, tags=(None, (f'Ky{par ^ 1}', None)))
    else:
        set_stream1(L)
        att_dma(L, par, tags=((f'Vy{par}', None), (f'Ky{par ^ 1}', None)))
        fix_stream1(L)
    tail(L, par)
    softmax_blocks(L, par ^ 1, (2, 3))
    yfull(L, par, tv, diag=True)
    L1 = schedule(L, verbose=name)
    L = [nop(6)]
    lv = [vTmp[4 + qb] for qb in range(4)]
    for qb in range(4):
        L.append(valu('v_accvgpr_read_b32', lv[qb], aL(qb)[0]))
    L += [salu('s_lshl_b32', sNt, sP, 1), salu('s_add_u32', sNt, sNt, 1 if role == 'A' else 2)]
    check_l(L, f't1{role}', lv)
    L2 = linear(L)
    L3 = fallback_call(role, 0 if role == 'A' else 1)
    L = [label(f'L_ok_t1{role}')]
    src = 1 if role == 'A' else 0
    L.append(valu('v_add_u32', vTmp[20], hex(QX + src * 16 * K1), vL16))
    L.append(valu('v_add_u32', vTmp[21], hex(MX + src * K1), vL16))
    normalise_store(L, (0, 1), 16 + 64 * par)
    L.append(ds_read(vTmp[12:16], vTmp[21], 0))
    for qb in range(4):
        for dc in range(4):
            L.append(ds_read(aQ(qb, dc), vTmp[20], (qb * 4 + dc) * K1))
    for qb in range(4):
        for r in range(4):
            L.append(valu('v_sub_f32', vNM(qb)[r], 0, vTmp[12 + qb]))
    L += [valu('v_add_u32', vKV, hex(64 * K1), vL16), salu('s_add_u32', sJ, sJ, 1)]
    L4 = linear(L)
    return L1, L2, L3, L4


def set_stream1(L):
    L += [salu('s_and_b32', sT1, sW, 1), salu('s_lshl_b32', sT1, sT1, 13), salu('s_add_u32', sT1, sT1, sHB),
          salu('s_lshl_b32', sT0, sP, 16), salu('s_sub_u32', sVsrc, sT1, sT0),
          salu('s_add_u32', sVsrc, sVsrc, hex(31 * 32 * K1 + 16 * K1)),
          salu('s_add_u32', sKsrc, sT1, hex(17 * 32 * K1))]


def fix_stream1(L):
    L += [salu('s_sub_u32', sVsrc, sKsrc, hex(16 * K1))]


def after_t2(L, role, inc=True):
    src = 1 if role == 'A' else 0
    L += [salu('s_sub_u32', sT0, 15, sP), salu('s_lshl_b32', sT0, sT0, 1), salu('s_add_u32', sT0, sT0, src),
          salu('s_mul_i32', sCtx, sT0, 182 * 4096), salu('s_lshl_b32', sT1, sH, 14),
          salu('s_add_u32', sCtx, sCtx, sT1), salu('s_add_u32', sCtx, sCtx, hex(CH))]
    if inc:
        L.append(salu('s_add_u32', sJ, sJ, 1))


def body_t2(role, with_x=True):
    par = 0 if role == 'A' else 1
    name = f'L_t2_{role}' + ('' if with_x else '_nox')
    L = [label(name)]
    head(L)
    tk = (f'Ky{par}', None)
    if role == 'A':
        L += [glue([scmp('s_cmp_eq_u32', sP, 0), salu('s_cselect_b32', sT1, 0, hex(OOB)),
                    salu('s_add_u32', sT1, sT1, hex(CNT + 32 * 256))]), atomic_add(vOne, vSigW, sWS, sT1)]
        set_stream1(L)
        att_dma(L, par, tags=((f'Vy{par}', None), (f'Ky{par ^ 1}', None)))
        fix_stream1(L)
    elif with_x:
        att_dma(L, par, tags=((f'Vy{par}', None), (f'Ky{par ^ 1}', None)))
    else:
        smp = sample_c(L)
        k3_setup_v(L)
        for i in L:
            i.bb = True
        k3_start(L, 'C2', smp, None)
    normalise_store(L, (2, 3), 16 + 64 * (par ^ 1))
    if with_x:
        xphase(L, par, 'd' if role == 'A' else 'n', tk)
    zero_acc(L, vTmp[12:16])
    zero_next(L, par ^ 1, vTmp[12:16])
    if with_x:
        softmax_blocks(L, par, (0, 1))
    after_t2(L, role, with_x)
    return schedule(L, verbose=name)


def sample_c(L):
    L.append(salu('s_mov_b32', sJ, hex(CNT + 32 * 256)))
    return poll_issue(L, sWS, sJ, vTmp[22], vTmp[21], dl=4)


def k3_start(L, name, smp, g):
    L.append(wait_for(L, [smp]))
    poll(L, name, sWS, sJ, 256, vTmp[22], vTmp[21], sampled=True)
    k3_dma(L, 0, g, 4)


def body_fin():
    par = 1
    L = [label('L_fin')]
    head(L)
    tk, tv = tg('x', par)
    smp = sample_c(L)
    tail(L, par)
    softmax_blocks(L, par ^ 1, (2, 3))
    Y = []
    yfull(Y, par, tv)
    cut = [n for n, i in enumerate(Y) if i.k == 'mfma'][30]
    L += Y[:cut]
    k3_start(L, 'C1', smp, 16 + 30)
    L += Y[cut:]
    k3_setup_v(L)
    return schedule(L, verbose='fin')


vM = [V(88), V(89), V(90), V(91)]


def dma_groups(sts):
    G = []
    for st in sts:
        T = []
        k3_dma(T, st)
        cur = []
        for i in T:
            cur.append(i)
            if i.k in VMEM:
                G.append(cur)
                cur = []
    return G


def gen_merge():
    out = {}
    pre = [label('L_merge'),
           salu('s_mul_i32', sT0, sW, 18 * K1), salu('s_add_u32', sT1, sT0, hex(20 * K1)),
           valu('v_add_u32', vM[0], sT1, vL16), salu('s_sub_u32', sT1, hex(74 * K1), sT0),
           valu('v_add_u32', vM[1], sT1, vL16),
           salu('s_lshl_b32', sNt, sP, 1), salu('s_sub_u32', sNt, 31, sNt), salu('s_add_u32', sT0, sW, 1),
           salu('s_lshr_b32', sT0, sT0, 1), salu('s_and_b32', sT0, sT0, 1), salu('s_add_u32', sNt, sNt, sT0),
           wait(lg=0, fence=True), barrier()]
    stamp(pre, t=vTmp[23])
    pre += [scmp('s_cmp_lt_u32', sW, 2), branch('s_cbranch_scc0', 'L_merge_hi')]
    pre = linear(pre)
    for role, mine, other, rid in (('lo', (0, 1), (2, 3), 2), ('hi', (2, 3), (0, 1), 3)):
        L = []
        for x, qb in enumerate(other):
            for db in range(8):
                L.append(ds_write(vM[0], aO(db, qb), (x * 8 + db) * K1))
            L.append(ds_write(vM[0], aL(qb), (16 + x) * K1))
        L = [label(f'L_merge_{role}')] + interleave(L, dma_groups([1]))
        L += [wait(lg=0, fence=True), barrier()]
        part = [V(16 + 4 * n, 4) for n in range(18)]
        for x in range(2):
            L.append(ds_read(part[x * 9 + 8], vM[1], (16 + x) * K1))
        for x in range(2):
            for db in range(8):
                L.append(ds_read(part[x * 9 + db], vM[1], (x * 8 + db) * K1))
        lv = [vTmp[4], vTmp[5]]
        for x, qb in enumerate(mine):
            L += [valu('v_accvgpr_read_b32', lv[x], aL(qb)[0]), valu('v_add_f32', lv[x], lv[x], part[x * 9 + 8][0])]
        L += [wait(lg=0, fence=True), barrier()]
        check_l(L, f'm{role}', lv)
        L1 = linear(L)
        F = [salu('s_mov_b32', sRole, rid), branch('s_branch', 'L_fallback'), label(f'L_ret_{rid}')]
        normalise_store(F, mine, 96)
        F += sum(dma_groups([2, 3]), [])
        F.append(branch('s_branch', 'L_k3'))
        L2 = linear(F)
        L = []
        for x, qb in enumerate(mine):
            L.append(valu('v_rcp_f32', lv[x], lv[x]))
        for x, qb in enumerate(mine):
            for dc in range(4):
                t = V(96 + 8 * (dc & 1), 8)
                for y in range(2):
                    for r in range(4):
                        L.append(valu('v_accvgpr_read_b32', t[4 * y + r], aO(2 * dc + y, qb)[r]))
                for y in range(2):
                    for r in range(4):
                        L.append(valu('v_add_f32', t[4 * y + r], t[4 * y + r], part[x * 9 + 2 * dc + y][r]))
                for r in range(8):
                    L.append(valu('v_mul_f32', t[r], t[r], lv[x]))
                d = pack2(L, t[0:4], t[4:8])
                L += [salu('s_add_u32', sT1, sCtx, hex(dc * 4096)), vstore(d, vL16, sWS, sT1, off=qb * K1, flags='sc1')]
        L = [label(f'L_ok_m{role}')] + interleave(L, dma_groups([2, 3]))
        if role == 'lo':
            L.append(branch('s_branch', 'L_k3'))
        L3 = linear(L)
        out[role] = (L1, L2, L3)
    return pre, out


K3B = (0, 128 * K1, 20 * K1, 40 * K1)
sKa, sKb, sKlb, sKq, sDp, sEp, sPart, sRt, sCt, sKn = (S(68 + i) for i in (0, 1, 3, 4, 5, 6, 7, 8, 9, 12))
vG2, vHi, vXo = V(4), V(6), V(7)
vKB = [[V(208 + 6 * x + n) for n in range(6)] for x in range(2)]
NF = 7


def k3_setup(L):
    rt, ct = sRt, sCt
    L += [salu('s_mov_b32', sWO[0], ptr(5)[0]), salu('s_and_b32', sWO[1], ptr(5)[1], '0xffff'),
          salu('s_mov_b32', sWO[2], hex(5242880)),
          salu('s_mov_b32', sW2[0], ptr(8)[0]), salu('s_and_b32', sW2[1], ptr(8)[1], '0xffff'),
          salu('s_mov_b32', sW2[2], hex(2211840))]
    L += [salu('s_bfe_u32', sKq, sWG, hex(1 | (2 << 16))),
          salu('s_and_b32', rt, sWG, 1), salu('s_lshl_b32', rt, rt, 3), salu('s_lshr_b32', sT0, sWG, 5),
          salu('s_add_u32', rt, rt, sT0),
          salu('s_bfe_u32', ct, sWG, hex(3 | (2 << 16))),
          salu('s_lshl_b32', sEp, rt, 2), salu('s_add_u32', sEp, sEp, ct),
          salu('s_mul_i32', sPart, sEp, 16 * 20 * K1), salu('s_add_u32', sPart, sPart, hex(PART)),
          salu('s_lshl_b32', sEp, sEp, 8), salu('s_add_u32', sEp, sEp, hex(CNT + 41 * 256)),
          salu('s_sub_u32', sT0, 15, rt), salu('s_min_u32', sDp, sT0, rt), salu('s_lshl_b32', sDp, sDp, 8),
          salu('s_add_u32', sDp, sDp, hex(CNT + 33 * 256)),
          salu('s_lshl_b32', sKa, rt, 1), salu('s_lshr_b32', sT0, sW, 1), salu('s_add_u32', sKa, sKa, sT0),
          salu('s_mul_i32', sKa, sKa, 182 * 2), salu('s_and_b32', sT0, sW, 1), salu('s_add_u32', sKa, sKa, sT0),
          salu('s_lshl_b32', sKa, sKa, 11), salu('s_add_u32', sKa, sKa, hex(CH)),
          salu('s_mul_i32', sKb, sW, 16 * 1280), salu('s_mul_i32', sT0, ct, 320), salu('s_add_u32', sKb, sKb, sT0),
          salu('s_and_b32', sT0, ct, 1), salu('s_lshl_b32', sKn, sT0, 6), salu('s_add_u32', sKb, sKb, sKn),
          salu('s_mul_i32', sT0, sT0, 320), salu('s_sub_u32', sKn, 256, sT0),
          salu('s_mul_i32', sKlb, sW, 5 * K1)]


def k3_setup_g2(L):
    t0, t1, t2 = V(18), V(19), V(20)
    L += [valu('v_bfe_u32', t0, vTid, 2, 4), valu('v_mul_u32_u24', t0, 1280, t0), valu('v_bfe_u32', t1, vTid, 4, 1),
          valu('v_lshlrev_b32', t1, 1, t1), valu('v_and_b32', t2, 3, vTid), valu('v_xor_b32', t1, t1, t2),
          valu('v_lshl_add_u32', vG2, t1, 4, t0), valu('v_add_u32', V(13), 4096, vL16)]


vHi = V(13)


def k3_setup_v(L):
    t0, t1, t2, wide, narrow = V(8), V(9), V(10), V(2), V(3)
    L += [valu('v_bfe_u32', t0, vTid, 2, 3), valu('v_bfe_u32', t1, vTid, 5, 1), valu('v_and_b32', t2, 3, vTid),
          valu('v_lshlrev_b32', t2, 3, t2),
          valu('v_lshl_add_u32', wide, t0, 7, t2), valu('v_lshl_add_u32', wide, t1, 10, wide),
          valu('v_lshl_add_u32', narrow, t0, 6, t2), valu('v_lshl_add_u32', narrow, t1, 9, narrow),
          valu('v_add_u32', narrow, hex(4 * K1), narrow),
          valu('v_lshrrev_b32', t1, 1, t0), valu('v_lshrrev_b32', t0, 2, t0)]
    for n in range(6):
        L += [valu('v_xor_b32', t2, n & 3, t1 if n < 4 else t0),
              valu('v_lshl_add_u32', vKB[0][n], t2, 5, wide if n < 4 else narrow),
              valu('v_add_u32', vKB[1][n], hex(K3B[1]), vKB[0][n])]


sXo = [S(90), S(91), S(100), S(101), S(3)]


def k3_setup_x(L, g):
    t0 = V(8)
    rt, ct = sRt, sCt
    n0 = len(L)
    L += [salu('s_and_b32', sT0, ct, 1), salu('s_lshl_b32', sT0, sT0, 1), salu('s_and_b32', sT1, sW, 1),
          salu('s_mul_i32', sT1, sT1, 5), salu('s_add_u32', sT0, sT0, sT1)]
    for i in range(5):
        L += [salu('s_add_u32', sXo[i], sT0, i),
              glue([scmp('s_cmp_ge_u32', sXo[i], 10), salu('s_cselect_b32', sT1, 10, 0)]),
              salu('s_sub_u32', sXo[i], sXo[i], sT1), salu('s_lshl_b32', sXo[i], sXo[i], 5)]
    L += [salu('s_mul_i32', ct, ct, 320),
          salu('s_lshl_b32', rt, rt, 2), salu('s_add_u32', rt, rt, sKq), salu('s_lshl_b32', rt, rt, 1),
          salu('s_lshr_b32', sT0, sW, 1), salu('s_add_u32', rt, rt, sT0), salu('s_lshl_b32', rt, rt, 4),
          valu('v_and_b32', t0, 15, vTid), valu('v_add_u32', t0, rt, t0), valu('v_mul_u32_u24', vXo, 1280, t0),
          valu('v_bfe_u32', t0, vTid, 4, 2), valu('v_lshl_add_u32', vXo, t0, 3, vXo), valu('v_add_u32', vXo, ct, vXo)]
    for i in L[n0:]:
        i.rel = g


def k3_acc(nb, qb): return V(16 + (nb * 2 + qb) * 4, 4)
def k3_fb(s, ks, nb): return A(80 * (s & 1) + (nb * 2 + ks) * 4, 4)


def k3_fa(s, ks, qb):
    o = (ks * 2 + qb) * 4
    return V(176 + 16 * s + o, 4) if s < 2 else A(160 + 16 * (s % 5) + o, 4)


def k3_dma(L, s, g0=None, step=4):
    sl = s % 4
    n = [0]

    def kw():
        n[0] += 1
        return {} if g0 is None else dict(rel=g0 + step * (n[0] - 1), dl=g0 + step * (n[0] - 1) + 2)
    ta, tb = rot(), rot()
    if s < NF:
        L += [salu('s_mul_i32', ta, sKq, NF * 8192), salu('s_mul_i32', tb, sKq, NF * 64 * 1280)]
        ca, cb, srdx = (128 + 2 * s) * 4096, s * 64 * 1280, sW2
    else:
        L += [salu('s_lshl_b32', ta, sKq, 17), salu('s_mul_i32', tb, sKq, 16 * 64 * 1280)]
        ca, cb, srdx = 2 * (s - NF) * 4096, (s - NF) * 64 * 1280, sWO
    L += [salu('s_add_u32', ta, ta, sKa), salu('s_add_u32', ta, ta, hex(ca)),
          salu('s_add_u32', tb, tb, sKb), salu('s_add_u32', tb, tb, hex(cb))]
    if s == NF - 1:
        L.append(glue([scmp('s_cmp_lt_u32', sKq, 3), salu('s_cselect_b32', ta, ta, hex(OOB))]))
    if 'a' in OPT['k3x'] and s > 3:
        L.append(salu('s_mov_b32', ta, hex(OOB)))
    if 'b' in OPT['k3x'] and s > 3:
        L.append(salu('s_mov_b32', tb, hex(OOB)))
    out = []
    for q in range(4):
        out.append(vload(k3_fa(s, q >> 1, q & 1), vHi if q >> 1 else vL16, sWS, ta, off=(q & 1) * K1, flags='sc1', **kw()))
        L.append(out[-1])
    for q in range(5):
        goff = hex((q >> 1) * 128 + (q & 1) * 8 * 1280) if q < 4 else sKn
        L.append(salu('s_add_u32', 'm0', sKlb, hex(K3B[sl] + q * K1)))
        if q:
            L.append(salu('s_add_u32', ta, tb, goff))
        out.append(dma(vWR if q < 4 else vG2, srdx, ta if q else tb, tag=(f'kb{sl}', s), **kw()))
        L.append(out[-1])
    return out


def k3_reads(L, s, g0=None):
    sl = s % 4
    n = 0
    for nb in range(10):
        for ks in range(2):
            for hf in range(2):
                off = (0 if sl == 1 else K3B[sl]) + (ks * 2 + hf) * 5 * K1 + (2 * K1 if 4 <= nb < 8 else 0)
                ad = vKB[sl == 1][nb & 3 if nb < 8 else nb - 4]
                L.append(ds_tr(k3_fb(s, ks, nb)[2 * hf:2 * hf + 2], ad, off, tag=(f'kb{sl}', s),
                               rel=None if g0 is None else g0 + (n * 3) // 4))
                n += 1


def gen_k3():
    NS = NF + 16
    L = [label('L_k3')]
    stamp(L, t=V(110))
    ns = 1 if OPT['stamps'] else 0
    L += [wait(vm=26 + 9 + ns, lg=0, fence=True), barrier()]
    n0 = len(L)
    ld = {2: None, 3: None}
    xres = [V(96 + 2 * nb, 2) for nb in range(5)]
    k3_reads(L, 0)
    for i in L[n0:]:
        i.bb = True
    dchk = int(OPT['dchk'])
    pbf = int(OPT['pbf'])
    L.append(valu('v_lshrrev_b32', V(9), 1, vL16))
    for s in range(NS):
        g0 = 40 * s
        if s == 0:
            L += [wait(vm=26 + ns, lg=0, fence=True), barrier()]
        elif s == 1:
            L += [wait(vm=9 + ns, lg=0, fence=True), barrier()]
        elif s == 2:
            L += [wait(lg=0, fence=True), barrier()]
        elif s + 1 < NS:
            L += [wait_for(L, ld[s + 1] + ([smp] if s == dchk else []), lg=0, fence=True), barrier()]
        else:
            L += [wait(lg=0)]
        if s % 4 == 0:
            stamp(L, t=V(110))
        if s == 1:
            L += [salu('s_lshl_b32', sT1, sP, 8), salu('s_add_u32', sT1, sT1, hex(CNT + 33 * 256)),
                  atomic_add(vOne, vSig, sWS, sT1)]
        if s == dchk:
            poll(L, 'D', sWS, sDp, 32, V(110), V(111), sampled=True)
        todo = [t for t in range(4, s + 5) if t < NS and t not in ld and (t < NF or s >= dchk)]
        for k, t in enumerate(todo):
            ld[t] = k3_dma(L, t, g0 + 1 + k * 38 // len(todo), max(1, 4 // len(todo)))
        if s == dchk - 1:
            smp = poll_issue(L, sWS, sDp, V(110), V(111), rel=g0 + 30)
        if s == 8:
            k3_setup_x(L, g0)
        if s == 19:
            L += [vload(xres[nb], vXo, sX, sXo[nb], rel=g0 + 4 * nb) for nb in range(5)]
        if s == NS - 2:
            L += [salu('s_lshl_b32', sT0, sW, 2), salu('s_add_u32', sT0, sT0, sKq),
                  salu('s_mul_i32', sT0, sT0, 20 * K1), salu('s_add_u32', sKa, sT0, sPart),
                  glue([scmp('s_cmp_eq_u32', sW, sKq), salu('s_cselect_b32', sKa, hex(OOB), sKa)])]
        if s + 1 < NS:
            k3_reads(L, s + 1, g0)
        for nb in range(10):
            for qb in range(2):
                a = k3_acc(nb, qb)
                if s == NF and int(OPT['fold']):
                    for r in range(4):
                        L.append(valu('v_mul_f32', a[r], hex(INVSCALE), a[r], tag='ci'))
                for ks in range(2):
                    L.append(mfma(a, k3_fb(s, ks, nb), k3_fa(s, ks, qb), 0 if (s == 0 and ks == 0) else a))
                if s == NS - 1 and not pbf:
                    t = rot()
                    L += [salu('s_add_u32', t, sKa, hex(((qb * 2 + nb // 5) * 5 + nb % 5) * K1)),
                          vstore(a, vL16, sWS, t, flags='sc1')]
            if s == NS - 1 and pbf and nb % 5 in (1, 3, 4):
                for qb in range(2):
                    pc = (nb % 5) >> 1
                    d = V(112 + (((nb // 5) * 3 + pc) * 2 + qb) * 4, 4)
                    t = rot()
                    L.append(salu('s_add_u32', t, sKa, hex((qb * 2 + nb // 5) * 5 * K1 + pc * K1)))
                    if pc < 2:
                        pack2(L, k3_acc(nb - 1, qb), k3_acc(nb, qb), dest=d)
                        L.append(vstore(d, vL16, sWS, t, flags='sc1'))
                    else:
                        a = k3_acc(nb, qb)
                        L += [valu('v_cvt_pk_bf16_f32', d[0], a[0], a[1]), valu('v_cvt_pk_bf16_f32', d[1], a[2], a[3]),
                              vstore(d[0:2], V(9), sWS, t, flags='sc1')]
    L1 = schedule(L, verbose='k3')
    L2 = linear([scmp('s_cmp_eq_u32', sW, sKq), branch('s_cbranch_scc0', 'L_k3_x')])
    L = [valu('v_add_u32', V(8), hex(64 * K1), vL16)]
    for nb in range(10):
        for qb in range(2):
            L.append(ds_write(V(8), k3_acc(nb, qb), ((qb * 2 + nb // 5) * 5 + nb % 5) * K1))
    L3 = linear(L)
    L = [label('L_k3_x')]
    stamp(L, t=V(110))
    L += [wait(vm=0, lg=0, fence=True), barrier(), atomic_add(vOne, vSig, sWS, sEp),
          salu('s_mul_i32', sT1, sW, 5 * K1), salu('s_add_u32', sT0, sT1, hex(64 * K1)),
          valu('v_add_u32', V(8), sT0, vL16),
          salu('s_mul_i32', sKa, sKq, 4 * 20 * K1), salu('s_add_u32', sKa, sKa, sPart), salu('s_add_u32', sKa, sKa, sT1)]
    own = [V(192 + 4 * nb, 4) for nb in range(5)]
    for nb in range(5):
        L.append(ds_read(own[nb], V(8), nb * K1))
    for nb in range(5):
        for d in range(2):
            L += [valu('v_lshlrev_b32', V(10), 16, xres[nb][d]), valu('v_and_b32', V(11), '0xffff0000', xres[nb][d]),
                  valu('v_add_f32', own[nb][2 * d], own[nb][2 * d], V(10)),
                  valu('v_add_f32', own[nb][2 * d + 1], own[nb][2 * d + 1], V(11))]
    poll(L, 'E', sWS, sEp, 4, V(110), V(111))
    stamp(L, t=V(110))
    rem = {}
    for x in range(1, 4):
        t = rot()
        L += [salu('s_add_u32', t, sKq, x), salu('s_and_b32', t, t, 3), salu('s_mul_i32', t, t, 20 * K1),
              salu('s_add_u32', t, t, sKa)]
        for nb in range(3 if pbf else 5):
            d = V(132 + ((x - 1) * 5 + nb) * 4, 2 if (pbf and nb == 2) else 4)
            ad = (V(9) if nb == 2 else vL16) if pbf else (vL16 if nb < 4 else vHi)
            rem[x] = vload(d, ad, sWS, t, off=(nb & 3) * K1, flags='sc1')
            L.append(rem[x])
    for x in range(1, 4):
        L.append(wait_for(L, [rem[x]]))
        for nb in range(5):
            if pbf:
                for d in range(2):
                    src = V(132 + (x - 1) * 20 + 2 * nb + d)
                    L += [valu('v_lshlrev_b32', V(10), 16, src), valu('v_and_b32', V(11), '0xffff0000', src),
                          valu('v_add_f32', own[nb][2 * d], own[nb][2 * d], V(10)),
                          valu('v_add_f32', own[nb][2 * d + 1], own[nb][2 * d + 1], V(11))]
            else:
                for r in range(4):
                    L.append(valu('v_add_f32', own[nb][r], own[nb][r], V(132 + ((x - 1) * 5 + nb) * 4 + r)))
            if x == 3:
                g = own[nb]
                L += [valu('v_cvt_pk_bf16_f32', g[0], g[0], g[1]), valu('v_cvt_pk_bf16_f32', g[1], g[2], g[3]),
                      vstore(g[0:2], vXo, sOUT, sXo[nb])]
    stamp(L, t=V(110))
    if OPT['stamps']:
        L.append(wait(vm=0))
    stamp(L, t=V(110))
    stamp(L, t=V(110), real=True)
    return L1, L2, L3, linear(L)


def build():
    init, nlater, late = gen_init()
    proj = gen_proj(nlater, late)
    pre0, fg1, fmask = body_first()
    OD, ED = body_normal(1, 'n', True, 'L_od'), body_normal(0, 'n', True, 'L_ed')
    OD1 = body_normal(1, 'n', True, 'L_od1', vm=8) + linear([branch('s_branch', 'L_ed')])
    ON, EN = body_normal(1, 'n', False, 'L_on'), body_normal(0, 'n', False, 'L_en')
    EdN, OdN = body_normal(0, 'd', False, 'L_edn'), body_normal(1, 'd', False, 'L_odn')
    EdD = body_normal(0, 'd', True, 'L_edd')
    TA1, TB1 = body_t1('A'), body_t1('B')
    TA2, TB2, TB2n = body_t2('A'), body_t2('B'), body_t2('B', False)
    FIN = body_fin()
    mpre, mrg = gen_merge()
    K3p = gen_k3()
    K3 = sum(K3p, [])
    FB = gen_fallback(4)

    def br(op, t): return [branch(op, t)]
    g_on = linear([wait(vm=2 if int(OPT['touch']) else 0),
                   salu('s_lshl_b32', sT0, sP, 1), scmp('s_cmp_lg_u32', sJ, sT0), branch('s_cbranch_scc1', 'L_en'),
                   scmp('s_cmp_eq_u32', sW, 2), branch('s_cbranch_scc1', 'L_edn')])
    g_en = linear([salu('s_lshl_b32', sT0, sJ, 2), salu('s_add_u32', sT0, sT0, sW), scmp('s_cmp_lg_u32', sT0, 15),
                   branch('s_cbranch_scc1', 'L_en_nosig'), salu('s_mov_b32', sT1, hex(CNT + 32 * 256)),
                   atomic_add(vOne, vSigW, sWS, sT1), label('L_en_nosig'),
                   salu('s_lshl_b32', sT0, sP, 1), salu('s_add_u32', sT0, sT0, 1), scmp('s_cmp_lg_u32', sJ, sT0),
                   branch('s_cbranch_scc1', 'L_on')])
    g_od = linear([scmp('s_cmp_lg_u32', sJ, 16), branch('s_cbranch_scc1', 'L_ed'),
                   scmp('s_cmp_eq_u32', sW, 3), branch('s_cbranch_scc1', 'L_edd'),
                   salu('s_lshl_b32', sT0, sP, 2), salu('s_add_u32', sT0, sT0, sW), scmp('s_cmp_eq_u32', sT0, 28),
                   branch('s_cbranch_scc1', 'L_edd')])
    g_ed = linear([scmp('s_cmp_lg_u32', sJ, 17), branch('s_cbranch_scc1', 'L_od'), branch('s_branch', 'L_fin')])
    g_ta2 = linear([scmp('s_cmp_lg_u32', sJ, 17), branch('s_cbranch_scc1', 'L_od'), branch('s_branch', 'L_fin')])
    g_tb1 = linear([scmp('s_cmp_eq_u32', sJ, 17), branch('s_cbranch_scc1', 'L_t2_B_nox')])
    g_tb2 = linear([scmp('s_cmp_lg_u32', sJ, 16), branch('s_cbranch_scc1', 'L_ed'), branch('s_branch', 'L_edd')])
    g_tb2n = linear(br('s_branch', 'L_merge'))
    end = [label('L_end'), raw('s_endpgm', 'br')]
    endp = [raw('s_endpgm', 'br')]

    stop = OPT['stop']
    if stop == 'proj':
        prog = init + proj + linear([wait(vm=0)]) + end
        return prog, [('all', prog)]
    prog = (init + proj + pre0 + fg1 + fmask +
            ON + g_on + EN + g_en + OdN + sum(TB1, []) + g_tb1 + TB2 + g_tb2 +
            TB2n + g_tb2n +
            EdN + sum(TA1, []) + TA2 + g_ta2 +
            OD1 + OD + g_od + ED + g_ed +
            EdD + FIN + mpre + sum(mrg['lo'], []) + sum(mrg['hi'], []) + K3 + endp +
            sum(FB, []) + end)
    paths = []
    fbp = FB[0] + FB[2] + FB[0][148:] + FB[1] + FB[2]
    for p in range(8):
        for w in range(4):
            for fb in (False, True):
                P = init + proj + pre0
                if w < 2:
                    for j in range(1, 17):
                        if j & 1:
                            P = P + (OD + g_od if j > 1 else OD1)
                        else:
                            P = P + (EdD if (j == 16 and p == 7 and w == 0) else ED + g_ed)
                    P = P + FIN
                else:
                    P = P + fg1 + (fmask if (p == 0 and w == 2) else [])
                    last = 2 * p if w == 2 else 2 * p + 1
                    for j in range(1, last + 1):
                        if j == last:
                            P = P + (EdN if w == 2 else OdN)
                        else:
                            P = P + (ON + g_on if j & 1 else EN + g_en)
                    T = TA1 if w == 2 else TB1
                    P = P + T[0] + T[1] + ((T[2] + fbp) if fb else []) + T[3]
                    j = last + 2
                    if w == 2:
                        P = P + TA2 + g_ta2
                    elif j == 17:
                        P = P + g_tb1 + TB2n + g_tb2n
                    else:
                        P = P + g_tb1 + TB2 + g_tb2
                    for j in range(last + 3, 17):
                        if j & 1:
                            P = P + OD + g_od
                        else:
                            P = P + (EdD if (j == 16 and w == 3) else ED + g_ed)
                    if not (w == 3 and p == 7):
                        P = P + FIN
                m = mrg['lo' if w < 2 else 'hi']
                P = P + mpre + m[0] + ((m[1][:2] + fbp + m[1][2:]) if fb else m[2]) + (K3 if w & 1 else K3p[0] + K3p[1] + K3p[3])
                paths.append((f'p{p}w{w}fb{int(fb)}', P))
    return prog, paths


HEADER = open(os.path.join(os.path.dirname(os.path.abspath(__file__)), 'header.txt')).read()


def emit(path):
    prog, paths = build()
    nerr = 0
    seen = set()
    for name, P in paths:
        nb = sum(1 for i in P if i.k == 'bar')
        for e in check_path(P, name) + check_path(P, name, fast=False):
            key = e.split(': ', 1)[1]
            if key not in seen:
                seen.add(key)
                nerr += 1
                if nerr < 40:
                    print('CHECK', e)
        seen.add(('nb', nb))
    print('; barrier counts:', sorted(x[1] for x in seen if isinstance(x, tuple)), 'errors', nerr,
          'instrs', len(prog))
    k = NAME + '_kernel'
    s = HEADER + f'''; @launch grid=(256,1,1) block=(256,1,1) lds=163840
.amdgcn_target "amdgcn-amd-amdhsa--gfx950"
.text
.globl {k}
.p2align 8
.type {k},@function
{k}:
''' + text(prog) + f'''.section .rodata,"a"
.p2align 6
.amdhsa_kernel {k}
  .amdhsa_next_free_vgpr 512
  .amdhsa_next_free_sgpr 102
  .amdhsa_accum_offset 256
  .amdhsa_group_segment_fixed_size 0
  .amdhsa_kernarg_size 96
  .amdhsa_user_sgpr_count 2
  .amdhsa_user_sgpr_kernarg_segment_ptr 1
  .amdhsa_system_sgpr_workgroup_id_x 1
.end_amdhsa_kernel
'''
    open(path, 'w').write(s)
    return nerr


if __name__ == '__main__':
    out = sys.argv[1]
    for a in sys.argv[2:]:
        k, _, v = a.partition('=')
        OPT[k] = v if v else True
    sys.exit(1 if emit(out) else 0)
```
